```python
import torch

def _softmax(x, axis=-1):
    return torch.softmax(x, dim=axis)
def _gelu(x):
    return torch.nn.functional.gelu(x, approximate="tanh")
def _silu(x):
    return torch.nn.functional.silu(x)
def _sigmoid(x):
    return torch.sigmoid(x)
def _layernorm(x, axis=-1, eps=1e-5):
    m = x.mean(dim=axis, keepdim=True)
    v = x.var(dim=axis, keepdim=True, unbiased=False)
    return (x - m) / torch.sqrt(v + eps)
def _scatter_add(tgt, idx, src, axis=0):
    return tgt.clone().index_add_(axis, idx, src)
def _segment_sum(src, seg, n):
    out = torch.zeros((n,) + src.shape[1:], dtype=src.dtype)
    return out.index_add_(0, seg, src)
def _pad(x, pw):
    flat = tuple(v for pair in reversed(pw) for v in pair)
    return torch.nn.functional.pad(x, flat)

kernel_name = 'standalone__consistency_rf_step__diffusion'

def setup_inputs():

    _w = (lambda a: (lambda t: t.to(torch.bfloat16) if t.is_floating_point() else t)(torch.as_tensor(a)))
    B, C, HW = 2, 128, 128
    return {
        "x": _w((lambda *s: torch.randn(*s, dtype=torch.bfloat16) * 0.05)(B, C, HW, HW)),
        "v": _w((lambda *s: torch.randn(*s, dtype=torch.bfloat16) * 0.05)(B, C, HW, HW)),
        "sigma": _w(torch.rand(B).to(float)),
    }

def reference(x, v, sigma):
    s = sigma.reshape(-1, 1, 1, 1)
    return x - s * v
```

```python
import sys, argparse

NAME = "standalone__consistency_rf_step__diffusion"
TOTAL = 2 * 128 * 128 * 128 * 2
HALF = TOTAL // 2

HEADER = """; Kernarg layout for this problem (48 bytes, ptrs only, base s[0:1]):
"""

def log2(n):
    l = n.bit_length() - 1
    assert 1 << l == n, n
    return l

def gen(block=256, U=1, mapping="blocked", xcd=False, ldpol="", stpol="", exact=True,
        order="vx", sgpr=None, vgpr=None, stipol=None, xpol=None, vpol=None, stamp=False, diag=None, nold=False, nost=False):
    per_wg = block * 16 * U
    nwg = TOTAL // per_wg
    xpol = ldpol if xpol is None else xpol
    vpol = ldpol if vpol is None else vpol
    L = []
    A = L.append
    A(HEADER.rstrip("\n"))
    A(f"; @launch grid=({nwg},1,1) block=({block},1,1) lds=0")
    write_stamps = stamp
    if stamp:
        A("; nstamp=6")
    if diag:
        stamp = True
    A('.amdgcn_target "amdgcn-amd-amdhsa--gfx950"')
    A(".text")
    A(f".globl {NAME}_kernel")
    A(".p2align 8")
    A(f".type {NAME}_kernel,@function")
    A(f"{NAME}_kernel:")
    if stamp:
        A("    s_memrealtime s[24:25]")
    A("    s_load_dwordx8 s[4:11], s[0:1], 0")
    if stamp:
        A("    s_load_dwordx2 s[22:23], s[0:1], 40")
        A("    v_lshrrev_b32 v1, 6, v0")
        A(f"    s_lshl_b32 s21, s2, {log2(block // 64)}")
        A("    v_readfirstlane_b32 s20, v1")
        A("    s_add_u32 s20, s20, s21")
        A("    s_lshl_b32 s20, s20, 5")
    A(f"    s_cmp_ge_u32 s2, {nwg}")
    A("    s_cbranch_scc1 L_end")
    if xcd:
        A(f"    s_and_b32 s3, s2, 7")
        A(f"    s_lshr_b32 s2, s2, 3")
        A(f"    s_lshl_b32 s3, s3, {log2(nwg // 8)}")
        A(f"    s_or_b32 s2, s2, s3")
    if mapping == "blocked":
        step = block * 16
        A(f"    s_lshl_b32 s3, s2, {log2(per_wg)}")
        A(f"    v_lshl_add_u32 v0, v0, 4, s3")
    elif mapping == "wave":
        step = 1024
        A(f"    s_lshl_b32 s3, s2, {log2(per_wg)}")
        if U > 1:
            A(f"    v_and_b32 v1, 63, v0")
            A(f"    v_lshrrev_b32 v0, 6, v0")
            A(f"    v_lshlrev_b32 v1, 4, v1")
            A(f"    v_lshl_add_u32 v0, v0, {log2(1024 * U)}, v1")
            A(f"    v_add_u32 v0, s3, v0")
        else:
            A(f"    v_lshl_add_u32 v0, v0, 4, s3")
    elif mapping == "lane":
        step = 16
        A(f"    s_lshl_b32 s3, s2, {log2(per_wg)}")
        A(f"    v_lshl_add_u32 v0, v0, {log2(16 * U)}, s3")
    else:
        raise ValueError(mapping)
    addr = []
    nv = 1
    span = (U - 1) * step
    bias = 0
    groups = {}
    for u in range(U):
        off = u * step
        g = off // 4096
        if g not in groups:
            if g == 0:
                groups[g] = 0
            else:
                groups[g] = nv
                A(f"    v_add_u32 v{nv}, {g * 4096}, v0")
                nv += 1
        addr.append((groups[g], off - g * 4096))
    base = (nv + 3) // 4 * 4
    X = [base + 8 * u for u in range(U)]
    V = [base + 8 * u + 4 for u in range(U)]
    T = base + 8 * U
    nvgpr = T + 4
    gd = diag and diag[0].startswith("g")
    if gd:
        A("    s_load_dwordx2 s[44:45], s[0:1], 32")
    A("    s_waitcnt lgkmcnt(0)")
    if stamp:
        A("    s_memrealtime s[26:27]")
    if gd:
        A(f"    s_cmp_lg_u32 s20, {diag[1] * (block // 64) * 32}")
        A("    s_cbranch_scc1 L_nopub")
        A(f"    v_mov_b32 v{T}, 0")
        A(f"    s_or_b32 s46, s24, 1")
        A(f"    v_mov_b32 v{T+1}, s46")
        A("    s_mov_b64 exec, 1")
        A(f"    global_store_dword v{T}, v{T+1}, s[44:45] sc0 sc1")
        A("    s_mov_b64 exec, -1")
        A("L_nopub:")
    def ld(reg, u, sb, pol):
        a, imm = addr[u]
        o = f" offset:{imm}" if imm else ""
        p = f" {pol}" if pol else ""
        if nold:
            return
        A(f"    global_load_dwordx4 v[{reg}:{reg+3}], v{a}, s[{sb}:{sb+1}]{o}{p}")
    for u in range(U):
        if order == "vx":
            ld(V[u], u, 6, vpol); ld(X[u], u, 4, xpol)
        else:
            ld(X[u], u, 4, xpol); ld(V[u], u, 6, vpol)
        if u == 0:
            A("    s_load_dword s12, s[8:9], 0")
    A(f"    s_cmp_ge_u32 s3, {HALF}")
    A("    s_cselect_b32 s13, 0, 16")
    A("    s_mov_b32 s14, 0xffff0000")
    A("    s_waitcnt lgkmcnt(0)")
    A("    s_lshl_b32 s12, s12, s13")
    A("    s_and_b32 s12, s12, s14")
    for u in range(U):
        outstanding_after = 2 * (U - 1 - u) + u
        later = 2 * (U - 1 - u) + (0 if nost else u)
        x, v = X[u], V[u]
        if exact:
            if order == "vx":
                A(f"    s_waitcnt vmcnt({min(63, later + 1)})")
            else:
                A(f"    s_waitcnt vmcnt({min(63, later)})")
            if stamp and u == 0:
                A("    s_memrealtime s[28:29]")
            for d in range(4):
                t = T + 2 * (d & 1)
                A(f"    v_lshlrev_b32 v{t}, 16, v{v+d}")
                A(f"    v_and_b32 v{t+1}, s14, v{v+d}")
                A(f"    v_pk_mul_f32 v[{t}:{t+1}], v[{t}:{t+1}], s[12:13] op_sel_hi:[1,0]")
                A(f"    v_cvt_pk_bf16_f32 v{v+d}, v{t}, v{t+1}")
            if order == "vx":
                A(f"    s_waitcnt vmcnt({min(63, later)})")
            if stamp and u == U - 1:
                A("    s_memrealtime s[30:31]")
            for d in range(4):
                A(f"    v_lshlrev_b32 v{T}, 16, v{v+d}")
                A(f"    v_and_b32 v{T+1}, s14, v{v+d}")
                A(f"    v_lshlrev_b32 v{T+2}, 16, v{x+d}")
                A(f"    v_and_b32 v{T+3}, s14, v{x+d}")
                A(f"    v_pk_add_f32 v[{T}:{T+1}], v[{T+2}:{T+3}], v[{T}:{T+1}] neg_lo:[0,1] neg_hi:[0,1]")
                A(f"    v_cvt_pk_bf16_f32 v{x+d}, v{T}, v{T+1}")
        else:
            A(f"    s_waitcnt vmcnt({min(63, later)})")
            for d in range(4):
                A(f"    v_lshlrev_b32 v{T}, 16, v{v+d}")
                A(f"    v_and_b32 v{T+1}, s14, v{v+d}")
                A(f"    v_lshlrev_b32 v{T+2}, 16, v{x+d}")
                A(f"    v_and_b32 v{T+3}, s14, v{x+d}")
                A(f"    v_pk_fma_f32 v[{T}:{T+1}], v[{T}:{T+1}], s[12:13], v[{T+2}:{T+3}] op_sel_hi:[1,0,1] neg_lo:[0,1,0] neg_hi:[0,1,0]")
                A(f"    v_cvt_pk_bf16_f32 v{x+d}, v{T}, v{T+1}")
        if stamp and u == U - 1:
            A("    s_memrealtime s[42:43]")
        a, imm = addr[u]
        o = f" offset:{imm}" if imm else ""
        p = f" {stpol}" if stpol else ""
        if not nost:
            A(f"    global_store_dwordx4 v{a}, v[{x}:{x+3}], s[10:11]{o}{p}")
    if diag:
        kind, a, b, K = diag
        A("    s_waitcnt vmcnt(0)")
        A("    s_memrealtime s[32:33]")
        A("    s_waitcnt lgkmcnt(0)")
        clk = "s_memtime" if kind == "cyc" else "s_memrealtime"
        SL = [24, 26, 28, 30, 42, 32]
        if kind == "amp":
            A(f"    s_sub_u32 s36, s{SL[b]}, s{SL[a]}")
            A(f"    s_mul_i32 s36, s36, {K}")
            A(f"    s_min_u32 s36, s36, 20000")
        elif kind in ("gamp", "gneg"):
            A("    v_mov_b32 v0, 0")
            A("    s_mov_b32 s47, 0")
            A("L_poll:")
            A("    global_load_dword v1, v0, s[44:45] sc0 sc1")
            A("    s_add_u32 s47, s47, 1")
            A("    s_waitcnt vmcnt(0)")
            A("    v_readfirstlane_b32 s46, v1")
            A("    s_cmp_ge_u32 s47, 200")
            A("    s_cbranch_scc1 L_polled")
            A("    s_cmp_eq_u32 s46, 0")
            A("    s_cbranch_scc1 L_poll")
            A("L_polled:")
            A(f"    s_sub_u32 s36, s{SL[b]}, s46")
            A(f"    s_add_u32 s36, s36, 200")
            A(f"    s_min_u32 s36, s36, 1000")
            if kind == "gneg":
                A(f"    s_sub_u32 s36, 1000, s36")
            A(f"    s_mul_i32 s36, s36, {K}")
        elif kind == "neg":
            A(f"    s_sub_u32 s36, s{SL[b]}, s{SL[a]}")
            A(f"    s_min_u32 s36, s36, 500")
            A(f"    s_sub_u32 s36, 500, s36")
            A(f"    s_mul_i32 s36, s36, {K}")
        else:
            A(f"    s_mov_b32 s36, {K}")
        A(f"    {clk} s[38:39]")
        A("    s_waitcnt lgkmcnt(0)")
        A("L_spin:")
        A(f"    {clk} s[40:41]")
        A("    s_waitcnt lgkmcnt(0)")
        A("    s_sub_u32 s37, s40, s38")
        A("    s_cmp_lt_u32 s37, s36")
        A("    s_cbranch_scc1 L_spin")
        sgpr = 48
    if write_stamps:
        A("    s_waitcnt vmcnt(0)")
        A("    s_memrealtime s[32:33]")
        A("    s_getreg_b32 s34, hwreg(HW_REG_XCC_ID)")
        A("    s_getreg_b32 s35, hwreg(HW_REG_HW_ID)")
        A("    s_mov_b64 exec, 1")
        A("    s_waitcnt lgkmcnt(0)")
        A("    v_mov_b32 v0, s20")
        for i, r in enumerate([24, 26, 28, 30, 42, 32, 34, 35]):
            A(f"    v_mov_b32 v{4+i}, s{r}")
        A("    global_store_dwordx4 v0, v[4:7], s[22:23]")
        A("    global_store_dwordx4 v0, v[8:11], s[22:23] offset:16")
        sgpr = 48
    A("L_end:")
    A("    s_endpgm")
    nvgpr = vgpr or nvgpr
    A('.section .rodata,"a"')
    A(".p2align 6")
    A(f".amdhsa_kernel {NAME}_kernel")
    A(f"  .amdhsa_next_free_vgpr {nvgpr}")
    A(f"  .amdhsa_next_free_sgpr {sgpr or 16}")
    A(f"  .amdhsa_accum_offset {(nvgpr + 3) // 4 * 4}")
    A("  .amdhsa_group_segment_fixed_size 0")
    A("  .amdhsa_kernarg_size 48")
    A("  .amdhsa_user_sgpr_count 2")
    A("  .amdhsa_user_sgpr_kernarg_segment_ptr 1")
    A("  .amdhsa_system_sgpr_workgroup_id_x 1")
    A("  .amdhsa_float_denorm_mode_32 3")
    A(".end_amdhsa_kernel")
    return "\n".join(L) + "\n"

if __name__ == "__main__":
    ap = argparse.ArgumentParser()
    ap.add_argument("out")
    ap.add_argument("--block", type=int, default=256)
    ap.add_argument("-U", type=int, default=1)
    ap.add_argument("--mapping", default="blocked")
    ap.add_argument("--xcd", action="store_true")
    ap.add_argument("--ld", default="")
    ap.add_argument("--st", default="")
    ap.add_argument("--fused", action="store_true")
    ap.add_argument("--order", default="vx")
    ap.add_argument("--stamp", action="store_true")
    ap.add_argument("--diag", default=None)
    ap.add_argument("--nold", action="store_true")
    ap.add_argument("--nost", action="store_true")
    a = ap.parse_args()
    open(a.out, "w").write(gen(a.block, a.U, a.mapping, a.xcd, a.ld.replace(",", " "), a.st.replace(",", " "), not a.fused, a.order, stamp=a.stamp, nold=a.nold, nost=a.nost, diag=(lambda d: d and (d[0], int(d[1]), int(d[2]), int(d[3])))(a.diag and a.diag.split(","))))
```

```python
import sys, argparse
from gen import NAME, TOTAL, HALF, HEADER, log2

def gen(block=256, K=8, D=2, mapping="gs", xcd=False, ldpol="", stpol="", exact=True,
        stamp=False, split=False, lds=0, laststpol=None, nlast=0, prio=None, cmask=0, nold=False, nost=False):
    per_wg = block * 16 * K
    nwg = TOTAL // per_wg
    L = []
    A = L.append
    A(HEADER.rstrip("\n"))
    A(f"; @launch grid=({nwg},1,1) block=({block},1,1) lds={lds}")
    if stamp:
        A("; nstamp=6")
    A('.amdgcn_target "amdgcn-amd-amdhsa--gfx950"')
    A(".text")
    A(f".globl {NAME}_kernel")
    A(".p2align 8")
    A(f".type {NAME}_kernel,@function")
    A(f"{NAME}_kernel:")
    if stamp:
        A("    s_memrealtime s[24:25]")
    A("    s_load_dwordx8 s[4:11], s[0:1], 0")
    if stamp:
        A("    s_load_dwordx2 s[22:23], s[0:1], 40")
        A("    v_lshrrev_b32 v1, 6, v0")
        A(f"    s_lshl_b32 s21, s2, {log2(block // 64)}")
        A("    v_readfirstlane_b32 s20, v1")
        A("    s_add_u32 s20, s20, s21")
        A("    s_lshl_b32 s20, s20, 5")
    A(f"    s_cmp_ge_u32 s2, {nwg}")
    A("    s_cbranch_scc1 L_end")
    if xcd:
        A(f"    s_and_b32 s3, s2, 7")
        A(f"    s_lshr_b32 s2, s2, 3")
        A(f"    s_lshl_b32 s3, s3, {log2(nwg // 8)}")
        A(f"    s_or_b32 s2, s2, s3")
    if mapping == "gs":
        step = TOTAL // K
        A(f"    s_lshl_b32 s3, s2, {log2(block * 16)}")
    elif mapping == "blk":
        step = block * 16
        A(f"    s_lshl_b32 s3, s2, {log2(per_wg)}")
    elif mapping in ("numa", "numas"):
        assert block == 256
        lk = log2(K)
        if mapping == "numa":
            offs = [u << 15 for u in range(K)]
            A(f"    s_lshr_b32 s3, s2, 3")
            A(f"    s_lshl_b32 s3, s3, {15 + lk}")
            A(f"    s_lshr_b32 s15, s3, 19")
            A(f"    s_xor_b32 s15, s15, s2")
            if cmask:
                A(f"    s_xor_b32 s15, s15, {cmask}")
            A(f"    s_and_b32 s13, s15, 6")
            A(f"    s_lshl_b32 s13, s13, 11              ; a12, a13")
            A(f"    s_and_b32 s15, s15, 1")
            A(f"    s_lshl_b32 s15, s15, 14              ; a14")
            A(f"    s_or_b32 s3, s3, s13")
            A(f"    s_or_b32 s3, s3, s15")
        else:
            assert K >= 4
            offs = [((u & 1) << 12) | ((u >> 1 & 1) << 14) | ((u >> 2) << 15) for u in range(K)]
            A(f"    s_lshr_b32 s3, s2, 3")
            A(f"    s_lshl_b32 s3, s3, 2")
            A(f"    s_and_b32 s13, s2, 3")
            A(f"    s_or_b32 s3, s3, s13")
            A(f"    s_lshl_b32 s3, s3, {13 + lk}")
            A(f"    s_lshr_b32 s15, s3, 19")
            A(f"    s_xor_b32 s15, s15, s2")
            if cmask:
                A(f"    s_xor_b32 s15, s15, {cmask}")
            A(f"    s_and_b32 s13, s15, 4")
            A(f"    s_lshl_b32 s13, s13, 11              ; a13")
            A(f"    s_or_b32 s3, s3, s13")
    else:
        raise ValueError(mapping)
    if mapping in ("gs", "blk"):
        offs = [u * step for u in range(K)]
    A(f"    v_lshl_add_u32 v0, v0, 4, s3")
    addr = []
    nv = 1
    groups = {}
    late = []
    for u in range(K):
        off = offs[u]
        g = off // 4096
        if g not in groups:
            if g == 0:
                groups[g] = 0
            else:
                groups[g] = nv
                ins = f"    v_add_u32 v{nv}, {g * 4096}, v0"
                (A if u < D else late.append)(ins)
                nv += 1
        addr.append((groups[g], off - g * 4096))
    base = (nv + 3) // 4 * 4
    NB = K if K <= 8 else D + 1
    X = [base + 8 * (u % NB) for u in range(K)]
    V = [base + 8 * (u % NB) + 4 for u in range(K)]
    T = base + 8 * NB
    nvgpr = T + 4
    A("    s_waitcnt lgkmcnt(0)")
    if stamp:
        A("    s_memrealtime s[26:27]")
    q = []
    def ld(kind, u):
        a, imm = addr[u]
        reg, sb = (V[u], 6) if kind == "v" else (X[u], 4)
        o = f" offset:{imm}" if imm else ""
        p = f" {ldpol}" if ldpol else ""
        if nold:
            return
        A(f"    global_load_dwordx4 v[{reg}:{reg+3}], v{a}, s[{sb}:{sb+1}]{o}{p}")
        q.append((kind, u))
    def wait(op):
        if nold:
            return
        n = len(q) - 1 - q.index(op)
        assert n <= 63
        A(f"    s_waitcnt vmcnt({n})")
    for u in range(min(D, K)):
        ld("v", u); ld("x", u)
        if u == 0:
            A("    s_load_dword s12, s[8:9], 0")
    for ins in late:
        A(ins)
    A("    s_mov_b32 s14, 0xffff0000")
    if mapping == "gs":
        A("    s_waitcnt lgkmcnt(0)")
        A("    s_and_b32 s13, s12, s14")
        A("    s_lshl_b32 s12, s12, 16")
    else:
        A(f"    s_cmp_ge_u32 s3, {HALF}")
        A("    s_cselect_b32 s13, 0, 16")
        A("    s_waitcnt lgkmcnt(0)")
        A("    s_lshl_b32 s12, s12, s13")
        A("    s_and_b32 s12, s12, s14")
    for u in range(K):
        x, v = X[u], V[u]
        hi = mapping == "gs" and u >= K // 2
        if exact:
            wait(("v", u))
            if stamp and u == 0:
                A("    s_memrealtime s[28:29]")
            if u + D < K and split:
                ld("v", u + D)
            sel = "op_sel:[0,1] op_sel_hi:[1,1]" if hi else "op_sel_hi:[1,0]"
            for d in range(4):
                t = T + 2 * (d & 1)
                A(f"    v_lshlrev_b32 v{t}, 16, v{v+d}")
                A(f"    v_and_b32 v{t+1}, s14, v{v+d}")
                A(f"    v_pk_mul_f32 v[{t}:{t+1}], v[{t}:{t+1}], s[12:13] {sel}")
                A(f"    v_cvt_pk_bf16_f32 v{v+d}, v{t}, v{t+1}")
            wait(("x", u))
            if stamp and u == K - 1:
                A("    s_memrealtime s[30:31]")
            if u + D < K:
                if not split:
                    ld("v", u + D)
                ld("x", u + D)
            for d in range(4):
                A(f"    v_lshlrev_b32 v{T}, 16, v{v+d}")
                A(f"    v_and_b32 v{T+1}, s14, v{v+d}")
                A(f"    v_lshlrev_b32 v{T+2}, 16, v{x+d}")
                A(f"    v_and_b32 v{T+3}, s14, v{x+d}")
                A(f"    v_pk_add_f32 v[{T}:{T+1}], v[{T+2}:{T+3}], v[{T}:{T+1}] neg_lo:[0,1] neg_hi:[0,1]")
                A(f"    v_cvt_pk_bf16_f32 v{x+d}, v{T}, v{T+1}")
        else:
            wait(("x", u))
            if stamp and u == 0:
                A("    s_memrealtime s[28:29]")
            if stamp and u == K - 1:
                A("    s_memrealtime s[30:31]")
            if u + D < K:
                ld("v", u + D); ld("x", u + D)
            sel = "op_sel:[0,1,0] op_sel_hi:[1,1,1]" if hi else "op_sel_hi:[1,0,1]"
            for d in range(4):
                A(f"    v_lshlrev_b32 v{T}, 16, v{v+d}")
                A(f"    v_and_b32 v{T+1}, s14, v{v+d}")
                A(f"    v_lshlrev_b32 v{T+2}, 16, v{x+d}")
                A(f"    v_and_b32 v{T+3}, s14, v{x+d}")
                A(f"    v_pk_fma_f32 v[{T}:{T+1}], v[{T}:{T+1}], s[12:13], v[{T+2}:{T+3}] {sel} neg_lo:[0,1,0] neg_hi:[0,1,0]")
                A(f"    v_cvt_pk_bf16_f32 v{x+d}, v{T}, v{T+1}")
        if stamp and u == K - 1:
            A("    s_memrealtime s[36:37]")
        a, imm = addr[u]
        o = f" offset:{imm}" if imm else ""
        pol = laststpol if (laststpol is not None and u >= K - nlast) else stpol
        p = f" {pol}" if pol else ""
        if nost:
            continue
        A(f"    global_store_dwordx4 v{a}, v[{x}:{x+3}], s[10:11]{o}{p}")
        q.append(("s", u))
    sgpr = 16
    if stamp:
        A("    s_waitcnt vmcnt(0)")
        A("    s_memrealtime s[32:33]")
        A("    s_getreg_b32 s34, hwreg(HW_REG_XCC_ID)")
        A("    s_getreg_b32 s35, hwreg(HW_REG_HW_ID)")
        A("    s_mov_b64 exec, 1")
        A("    s_waitcnt lgkmcnt(0)")
        A("    v_mov_b32 v0, s20")
        for i, r in enumerate([24, 26, 28, 30, 36, 32, 34, 35]):
            A(f"    v_mov_b32 v{4+i}, s{r}")
        A("    global_store_dwordx4 v0, v[4:7], s[22:23]")
        A("    global_store_dwordx4 v0, v[8:11], s[22:23] offset:16")
        sgpr = 40
    A("L_end:")
    A("    s_endpgm")
    A('.section .rodata,"a"')
    A(".p2align 6")
    A(f".amdhsa_kernel {NAME}_kernel")
    A(f"  .amdhsa_next_free_vgpr {nvgpr}")
    A(f"  .amdhsa_next_free_sgpr {sgpr}")
    A(f"  .amdhsa_accum_offset {(nvgpr + 3) // 4 * 4}")
    A("  .amdhsa_group_segment_fixed_size 0")
    A("  .amdhsa_kernarg_size 48")
    A("  .amdhsa_user_sgpr_count 2")
    A("  .amdhsa_user_sgpr_kernarg_segment_ptr 1")
    A("  .amdhsa_system_sgpr_workgroup_id_x 1")
    A("  .amdhsa_float_denorm_mode_32 3")
    A(".end_amdhsa_kernel")
    return "\n".join(L) + "\n"

if __name__ == "__main__":
    ap = argparse.ArgumentParser()
    ap.add_argument("out")
    ap.add_argument("--block", type=int, default=256)
    ap.add_argument("-K", type=int, default=8)
    ap.add_argument("-D", type=int, default=2)
    ap.add_argument("--mapping", default="gs")
    ap.add_argument("--xcd", action="store_true")
    ap.add_argument("--ld", default="")
    ap.add_argument("--st", default="")
    ap.add_argument("--lastst", default=None)
    ap.add_argument("--nlast", type=int, default=0)
    ap.add_argument("--fused", action="store_true")
    ap.add_argument("--split", action="store_true")
    ap.add_argument("--stamp", action="store_true")
    ap.add_argument("-c", type=int, default=0)
    ap.add_argument("--nold", action="store_true")
    ap.add_argument("--nost", action="store_true")
    a = ap.parse_args()
    last = None if a.lastst is None else a.lastst.replace(",", " ").replace("def", "")
    open(a.out, "w").write(gen(a.block, a.K, a.D, a.mapping, a.xcd, a.ld.replace(",", " "), a.st.replace(",", " "),
                               not a.fused, a.stamp, a.split, laststpol=last, nlast=a.nlast, cmask=a.c, nold=a.nold, nost=a.nost))
```

```python
import sys, argparse, re
import gen as G

def build(enc, K):
    src = G.gen(256, 4, "blocked", False, "nt", "", True, "vx")
    lines = src.split("\n")
    i0 = next(i for i, l in enumerate(lines) if "s_cbranch_scc1 L_end" in l)
    pre = []
    A = pre.append
    A("    s_load_dwordx2 s[44:45], s[0:1], 32")
    A("    v_readfirstlane_b32 s20, v0")
    A("    s_lshl_b32 s21, s2, 8")
    A("    s_add_u32 s20, s20, s21")
    A("    s_mov_b32 s36, 0")
    A("    s_waitcnt lgkmcnt(0)")
    A("    s_cmp_eq_u32 s20, 0")
    A("    s_cbranch_scc1 L_probe")
    A("    s_memrealtime s[38:39]")
    A("    s_waitcnt lgkmcnt(0)")
    A("L_dly:")
    A("    s_sleep 8")
    A("    s_memrealtime s[40:41]")
    A("    s_waitcnt lgkmcnt(0)")
    A("    s_sub_u32 s37, s40, s38")
    A("    s_cmp_lt_u32 s37, 6000")
    A("    s_cbranch_scc1 L_dly")
    A("    s_branch L_main")
    A("L_probe:")
    A("    s_memrealtime s[38:39]")
    A("    s_getreg_b32 s34, hwreg(HW_REG_XCC_ID)")
    A("    s_and_b32 s34, s34, 15")
    A("    s_mov_b64 exec, 1")
    for bi, sb in enumerate((4, 6, 10)):
        A("    v_mov_b32 v9, 0x10000")
        A(f"    global_load_dword v10, v9, s[{sb}:{sb+1}]")
        A("    s_waitcnt vmcnt(0)")
        for cl in (0, 1):
            A(f"    s_mov_b32 s{24+2*bi+cl}, 0")
        for i in range(16):
            for cl in (0, 1):
                off = (cl << 13) | ((i & 1) << 12) | (((i >> 1) & 1) << 14) | ((i >> 2) * 1024 + 256)
                A(f"    v_mov_b32 v9, {off}")
                A("    s_memtime s[16:17]")
                A("    s_waitcnt lgkmcnt(0)")
                A(f"    global_load_dword v10, v9, s[{sb}:{sb+1}]")
                A("    s_waitcnt vmcnt(0)")
                A("    s_memtime s[18:19]")
                A("    s_waitcnt lgkmcnt(0)")
                A("    s_sub_u32 s16, s18, s16")
                A("    s_min_u32 s16, s16, 1500")
                A(f"    s_add_u32 s{24+2*bi+cl}, s{24+2*bi+cl}, s16")
    A("    s_mov_b32 s35, 0")
    for bi in range(3):
        A(f"    s_cmp_lt_u32 s{25+2*bi}, s{24+2*bi}")
        A(f"    s_cselect_b32 s16, {1 << bi}, 0")
        A("    s_or_b32 s35, s35, s16")
    A("    v_mov_b32 v9, 0")
    for i, r in enumerate([34, 35, 24, 25, 26, 27, 28, 29, 4, 5, 6, 7, 10, 11, 0, 1]):
        A(f"    v_mov_b32 v{12+i}, s{r}")
    for j in range(4):
        A(f"    global_store_dwordx4 v9, v[{12+4*j}:{15+4*j}], s[44:45] offset:{16*j}")
    A("    s_waitcnt vmcnt(0)")
    A("    s_mov_b64 exec, -1")
    if enc == "xcc":
        A(f"    s_mul_i32 s36, s34, {K}")
    elif enc == "near":
        A(f"    s_mul_i32 s36, s35, {K}")
    elif enc == "zero":
        A(f"    s_mov_b32 s36, 0")
    A("    s_add_u32 s36, s36, 8000")
    A("L_main:")
    lines[i0+1:i0+1] = pre
    i1 = next(i for i, l in enumerate(lines) if l.startswith("L_end:"))
    post = []
    A = post.append
    A("    s_waitcnt vmcnt(0)")
    A("L_spin:")
    A("    s_memrealtime s[40:41]")
    A("    s_waitcnt lgkmcnt(0)")
    A("    s_sub_u32 s37, s40, s38")
    A("    s_cmp_lt_u32 s37, s36")
    A("    s_cbranch_scc1 L_spin")
    lines[i1:i1] = post
    s = "\n".join(lines)
    s = s.replace(".amdhsa_next_free_sgpr 16", ".amdhsa_next_free_sgpr 48")
    return s

if __name__ == "__main__":
    open(sys.argv[1], "w").write(build(sys.argv[2], int(sys.argv[3])))
```

```python
import sys, argparse
from gen import NAME, TOTAL, HALF, HEADER, log2

def gen(block=256, U=4, ldpol="nt", stpol="", sig="after2", stamps=None, late=False, order="vx",
        wbl2=None, perm=None, step=None, rot=False, nost=False, prio=None, bar=False, nearly=0, estpol='', barat=None, pols=None):
    per_wg = block * 16 * U
    nwg = TOTAL // per_wg
    L = []
    A = L.append
    A(HEADER.rstrip("\n"))
    A(f"; @launch grid=({nwg},1,1) block=({block},1,1) lds=0")
    SR = [24, 26, 28, 30, 36, 32]
    if stamps:
        assert len(stamps) == 6
        A("; nstamp=6")
    def stamp(name):
        if stamps and name in stamps:
            r = SR[stamps.index(name)]
            A(f"    s_memrealtime s[{r}:{r+1}]")
    A('.amdgcn_target "amdgcn-amd-amdhsa--gfx950"')
    A(".text")
    A(f".globl {NAME}_kernel")
    A(".p2align 8")
    A(f".type {NAME}_kernel,@function")
    A(f"{NAME}_kernel:")
    stamp("entry")
    A("    s_load_dwordx8 s[4:11], s[0:1], 0")
    if stamps:
        A("    s_load_dwordx2 s[22:23], s[0:1], 40")
        A("    v_lshrrev_b32 v1, 6, v0")
        A(f"    s_lshl_b32 s21, s2, {log2(block // 64)}")
        A("    v_readfirstlane_b32 s20, v1")
        A("    s_add_u32 s20, s20, s21")
        A("    s_lshl_b32 s20, s20, 5")
    A(f"    s_cmp_ge_u32 s2, {nwg}")
    A("    s_cbranch_scc1 L_end")
    if prio is not None:
        A(f"    s_setprio {prio}")
    step = step or block * 16
    per = step // (block * 16)
    if per == 1:
        A(f"    s_lshl_b32 s3, s2, {log2(per_wg)}")
    else:
        A(f"    s_and_b32 s15, s2, {per - 1}")
        A(f"    s_lshr_b32 s3, s2, {log2(per)}")
        A(f"    s_lshl_b32 s3, s3, {log2(step * U)}")
        A(f"    s_lshl_b32 s15, s15, {log2(block * 16)}")
        A(f"    s_or_b32 s3, s3, s15")
    assert step * U <= HALF
    A(f"    v_lshl_add_u32 v0, v0, 4, s3")
    perm = perm or list(range(U))
    addr = []
    nv = 1
    groups = {}
    if rot:
        A(f"    s_lshr_b32 s15, s2, {rot}")
        A(f"    s_and_b32 s15, s15, {U - 1}")
        A(f"    s_lshl_b32 s15, s15, {log2(step)}")
        A(f"    v_xor_b32 v0, s15, v0")
    for u in range(U):
        off = perm[u] * step
        g = off // 4096 if not rot else u
        if g not in groups:
            if off == 0:
                groups[g] = 0
            else:
                groups[g] = nv
                if rot:
                    A(f"    v_xor_b32 v{nv}, {off}, v0")
                else:
                    A(f"    v_add_u32 v{nv}, {g * 4096}, v0")
                nv += 1
        addr.append((groups[g], 0 if rot else off - g * 4096))
    if sig == "vec":
        VS = nv
        nv += 1
        A(f"    v_mov_b32 v{VS}, 0")
    base = (nv + 3) // 4 * 4
    X = [base + 8 * u for u in range(U)]
    V = [base + 8 * u + 4 for u in range(U)]
    T = base + 8 * U
    nvgpr = T + 4
    A(f"    s_cmp_ge_u32 s3, {HALF}")
    A("    s_cselect_b32 s13, 0, 16")
    A("    s_mov_b32 s14, 0xffff0000")
    A("    s_waitcnt lgkmcnt(0)")
    stamp("karg")
    q = []
    def ld(kind, u):
        a, imm = addr[u]
        reg, sb = (V[u], 6) if kind == "v" else (X[u], 4)
        o = f" offset:{imm}" if imm else ""
        p = f" {ldpol}" if ldpol else ""
        A(f"    global_load_dwordx4 v[{reg}:{reg+3}], v{a}, s[{sb}:{sb+1}]{o}{p}")
        q.append((kind, u))
    def wait(op):
        n = len(q) - 1 - q.index(op)
        assert n <= 63
        A(f"    s_waitcnt vmcnt({n})")
    if sig == "first":
        A("    s_load_dword s12, s[8:9], 0")
    if sig == "vec":
        A(f"    global_load_dword v{VS}, v{VS}, s[8:9]")
        q.append(("sig", 0))
    if order == "vx":
        seq = [(k, u) for u in range(U) for k in "vx"]
    elif order == "vvxx":
        seq = [("v", u) for u in range(U)] + [("x", u) for u in range(U)]
    elif order == "xv":
        seq = [(k, u) for u in range(U) for k in "xv"]
    for i, (k, u) in enumerate(seq):
        ld(k, u)
        if (sig == "after2" and i == 1) or (sig == "after1" and i == 0) or (sig == "last" and i == len(seq) - 1):
            A("    s_load_dword s12, s[8:9], 0")
    stamp("issued")
    if sig == "vec":
        wait(("sig", 0))
        A(f"    v_readfirstlane_b32 s12, v{VS}")
    else:
        A("    s_waitcnt lgkmcnt(0)")
    stamp("sigma")
    A("    s_lshl_b32 s12, s12, s13")
    A("    s_and_b32 s12, s12, s14")
    done = set()
    def need(op):
        i = q.index(op)
        if all(q[j] in done for j in range(i + 1)):
            return
        wait(op)
        for j in range(i + 1):
            done.add(q[j])
    def mul(u):
        v = V[u]
        for d in range(4):
            t = T + 2 * (d & 1)
            A(f"    v_lshlrev_b32 v{t}, 16, v{v+d}")
            A(f"    v_and_b32 v{t+1}, s14, v{v+d}")
            A(f"    v_pk_mul_f32 v[{t}:{t+1}], v[{t}:{t+1}], s[12:13] op_sel_hi:[1,0]")
            A(f"    v_cvt_pk_bf16_f32 v{v+d}, v{t}, v{t+1}")
    def sub(u):
        x, v = X[u], V[u]
        for d in range(4):
            A(f"    v_lshlrev_b32 v{T}, 16, v{v+d}")
            A(f"    v_and_b32 v{T+1}, s14, v{v+d}")
            A(f"    v_lshlrev_b32 v{T+2}, 16, v{x+d}")
            A(f"    v_and_b32 v{T+3}, s14, v{x+d}")
            A(f"    v_pk_add_f32 v[{T}:{T+1}], v[{T+2}:{T+3}], v[{T}:{T+1}] neg_lo:[0,1] neg_hi:[0,1]")
            A(f"    v_cvt_pk_bf16_f32 v{x+d}, v{T}, v{T+1}")
    def st(u, pol=None):
        if nost:
            return
        a, imm = addr[u]
        o = f" offset:{imm}" if imm else ""
        pol = stpol if pol is None else pol
        p = f" {pol}" if pol else ""
        A(f"    global_store_dwordx4 v{a}, v[{X[u]}:{X[u]+3}], s[10:11]{o}{p}")
        q.append(("s", u))
    if order == "vvxx":
        for u in range(U):
            need(("v", u))
            if u == 0: stamp("first")
            mul(u)
        for u in range(U):
            need(("x", u))
            if u == U - 1: stamp("allld")
            sub(u)
            if not late:
                if u == U - 1: stamp("prest")
                st(u)
    elif barat is not None:
        held = []
        passed = False
        def gate(pt):
            nonlocal passed
            if pt == barat:
                A("    s_barrier")
                stamp("prest")
                passed = True
                for h in held:
                    st(h, pols[h] if pols else None)
                held.clear()
        gate("i")
        for u in range(U):
            need(("v", u))
            if u == 0: stamp("first")
            gate(f"v{u}")
            mul(u)
            need(("x", u))
            if u == U - 1: stamp("allld")
            gate(f"x{u}")
            sub(u)
            held.append(u)
            gate(f"c{u}")
            if passed or u < nearly:
                for h in held:
                    st(h, pols[h] if pols else None)
                held.clear()
        assert passed
    else:
        for u in range(U):
            need(("v", u))
            if u == 0: stamp("first")
            mul(u)
            need(("x", u))
            if u == U - 1: stamp("allld")
            sub(u)
            if late and u < nearly:
                st(u, estpol)
            if not late:
                if u == U - 1: stamp("prest")
                st(u)
                if wbl2 and u == wbl2[0]:
                    A(f"    s_and_b32 s15, s2, {wbl2[1]}")
                    A(f"    s_cmp_lg_u32 s15, {wbl2[2]}")
                    A(f"    s_cbranch_scc1 L_nowb")
                    A(f"    v_readfirstlane_b32 s15, v0")
                    A(f"    s_and_b32 s15, s15, {block * 16 - 1}")
                    A(f"    s_cmp_lg_u32 s15, 0")
                    A(f"    s_cbranch_scc1 L_nowb")
                    A(f"    buffer_wbl2 sc1")
                    A(f"    s_waitcnt vmcnt(0)")
                    A(f"L_nowb:")
    if late:
        if bar:
            A("    s_barrier")
        stamp("prest")
        for u in range(nearly, U):
            st(u)
    sgpr = 16
    if stamps:
        A("    s_waitcnt vmcnt(0)")
        stamp("end")
        A("    s_getreg_b32 s34, hwreg(HW_REG_XCC_ID)")
        A("    s_getreg_b32 s35, hwreg(HW_REG_HW_ID)")
        A("    s_mov_b64 exec, 1")
        A("    s_waitcnt lgkmcnt(0)")
        A("    v_mov_b32 v0, s20")
        for i, r in enumerate(SR + [34, 35]):
            A(f"    v_mov_b32 v{4+i}, s{r}")
        A("    global_store_dwordx4 v0, v[4:7], s[22:23]")
        A("    global_store_dwordx4 v0, v[8:11], s[22:23] offset:16")
        sgpr = 40
    A("L_end:")
    A("    s_endpgm")
    A('.section .rodata,"a"')
    A(".p2align 6")
    A(f".amdhsa_kernel {NAME}_kernel")
    A(f"  .amdhsa_next_free_vgpr {nvgpr}")
    A(f"  .amdhsa_next_free_sgpr {sgpr}")
    A(f"  .amdhsa_accum_offset {(nvgpr + 3) // 4 * 4}")
    A("  .amdhsa_group_segment_fixed_size 0")
    A("  .amdhsa_kernarg_size 48")
    A("  .amdhsa_user_sgpr_count 2")
    A("  .amdhsa_user_sgpr_kernarg_segment_ptr 1")
    A("  .amdhsa_system_sgpr_workgroup_id_x 1")
    A("  .amdhsa_float_denorm_mode_32 3")
    A(".end_amdhsa_kernel")
    return "\n".join(L) + "\n"

if __name__ == "__main__":
    ap = argparse.ArgumentParser()
    ap.add_argument("out")
    ap.add_argument("--block", type=int, default=256)
    ap.add_argument("-U", type=int, default=4)
    ap.add_argument("--ld", default="nt")
    ap.add_argument("--st", default="")
    ap.add_argument("--sig", default="after2")
    ap.add_argument("--stamps", default=None)
    ap.add_argument("--late", action="store_true")
    ap.add_argument("--nost", action="store_true")
    ap.add_argument("--order", default="vx")
    ap.add_argument("--wbl2", default=None)
    ap.add_argument("--perm", default=None)
    ap.add_argument("--step", type=int, default=None)
    ap.add_argument("--rot", type=int, default=0)
    ap.add_argument("--prio", type=int, default=None)
    ap.add_argument("--bar", action="store_true")
    ap.add_argument("--nearly", type=int, default=0)
    ap.add_argument("--est", default="")
    ap.add_argument("--barat", default=None)
    ap.add_argument("--pols", default=None)
    a = ap.parse_args()
    open(a.out, "w").write(gen(a.block, a.U, a.ld.replace(",", " ").replace("def", ""), a.st.replace(",", " "), a.sig,
        a.stamps and a.stamps.split(","), a.late, a.order,
        a.wbl2 and [int(t, 0) for t in a.wbl2.split(",")], a.perm and [int(t) for t in a.perm.split(",")],
        a.step, a.rot, a.nost, a.prio, a.bar, a.nearly, a.est.replace(',', ' '), a.barat, a.pols and [dict(d='', s='sc1', n='nt', t='sc1 nt', a='sc0 sc1')[c] for c in a.pols]))
```

```python
import sys, argparse
from gen import NAME, TOTAL, HALF, HEADER, log2

def gen(block=256, U=4, ldpol="nt", stpol="", sig="after2", stamps=None, late=False, order="vx",
        wbl2=None, perm=None, step=None, rot=False, nost=False, prio=None, bar=False, nearly=0, estpol='', barat=None, pols=None, numa=None, cbit=0, bits=None, postc=0):
    per_wg = block * 16 * U
    nwg = TOTAL // per_wg
    L = []
    A = L.append
    A(HEADER.rstrip("\n"))
    A(f"; @launch grid=({nwg},1,1) block=({block},1,1) lds=0")
    SR = [24, 26, 28, 30, 36, 32]
    if stamps:
        assert len(stamps) == 6
        A("; nstamp=6")
    def stamp(name):
        if stamps and name in stamps:
            r = SR[stamps.index(name)]
            A(f"    s_memrealtime s[{r}:{r+1}]")
    A('.amdgcn_target "amdgcn-amd-amdhsa--gfx950"')
    A(".text")
    A(f".globl {NAME}_kernel")
    A(".p2align 8")
    A(f".type {NAME}_kernel,@function")
    A(f"{NAME}_kernel:")
    stamp("entry")
    A("    s_load_dwordx8 s[4:11], s[0:1], 0")
    if stamps:
        A("    s_load_dwordx2 s[22:23], s[0:1], 40")
        A("    v_lshrrev_b32 v1, 6, v0")
        A(f"    s_lshl_b32 s21, s2, {log2(block // 64)}")
        A("    v_readfirstlane_b32 s20, v1")
        A("    s_add_u32 s20, s20, s21")
        A("    s_lshl_b32 s20, s20, 5")
    A(f"    s_cmp_ge_u32 s2, {nwg}")
    A("    s_cbranch_scc1 L_end")
    if prio is not None:
        A(f"    s_setprio {prio}")
    if bits:
        assert len(bits) == 13 and bits[-1][0] == "w"
        want = [f"t{i}" for i in range(6, log2(block))] + [f"u{i}" for i in range(log2(U))] + [f"w{i}" for i in range(log2(nwg))]
        assert sorted(want) == sorted(bits), (want, bits)
        def runs(kind):
            r = []
            i = 0
            while i < 13:
                if bits[i][0] == kind:
                    j = i
                    while j + 1 < 13 and bits[j + 1][0] == kind and int(bits[j + 1][1:]) == int(bits[j][1:]) + 1:
                        j += 1
                    r.append((int(bits[i][1:]), j - i + 1, 10 + i))
                    i = j + 1
                else:
                    i += 1
            return r
        first = True
        for src, n, dst in runs("w"):
            d = "s3" if first else "s15"
            A(f"    s_bfe_u32 {d}, s2, {hex(n << 16 | src)}")
            A(f"    s_lshl_b32 {d}, {d}, {dst}")
            if not first:
                A("    s_or_b32 s3, s3, s15")
            first = False
        tr = runs("t")
        if tr and tr[0][0] == 6 and tr[0][2] == 10:
            low = 6 + tr[0][1]
            tr = tr[1:]
        else:
            low = 6
        if tr:
            A(f"    v_and_b32 v1, {(1 << low) - 1}, v0")
            A(f"    v_lshl_add_u32 v1, v1, 4, s3")
            for k, (src, n, dst) in enumerate(tr):
                A(f"    v_bfe_u32 v2, v0, {src}, {n}")
                A(f"    v_lshl_add_u32 {'v0' if k == len(tr) - 1 else 'v1'}, v2, {dst}, v1")
        else:
            A(f"    v_lshl_add_u32 v0, v0, 4, s3")
        addr = []
        nv = 1
        groups = {0: 0}
        for u in range(U):
            off = sum(1 << (10 + bits.index(f"u{i}")) for i in range(log2(U)) if u >> i & 1)
            g = off // 4096
            if g not in groups:
                groups[g] = nv
                A(f"    v_add_u32 v{nv}, {g * 4096}, v0")
                nv += 1
            addr.append((groups[g], off - g * 4096))
        nv = max(nv, 3)
    elif numa:
        assert per_wg == 32768 and block in (512, 1024)
        A("    s_lshr_b32 s3, s2, 3")
        A("    s_lshl_b32 s3, s3, 2")
        A("    s_and_b32 s15, s2, 3")
        A("    s_or_b32 s3, s3, s15")
        A("    s_lshl_b32 s3, s3, 16")
        A("    s_lshr_b32 s15, s2, 2")
        A("    s_and_b32 s15, s15, 1                ; s")
        A("    s_lshr_b32 s16, s3, 21")
        A("    s_xor_b32 s16, s16, s15")
        if cbit:
            A("    s_xor_b32 s16, s16, 1")
        A("    s_and_b32 s16, s16, 1")
        A("    s_lshl_b32 s16, s16, 13              ; l<<13")
        A("    s_lshl_b32 s15, s15, 14              ; s<<14")
        A("    s_or_b32 s16, s16, s3")
        A("    s_or_b32 s15, s15, s3")
        addr = []
        if block == 512:
            if numa == "local":
                A("    v_lshl_add_u32 v0, v0, 4, s16")
                for u in range(1, 4):
                    A(f"    v_add_u32 v{u}, {u << 14}, v0")
            elif numa == "hyb":
                A("    v_lshl_add_u32 v2, v0, 4, s16")
                A("    v_lshl_add_u32 v0, v0, 4, s15")
                A(f"    v_add_u32 v1, {1 << 13}, v0")
                A(f"    v_add_u32 v2, {1 << 15}, v2")
                A(f"    v_add_u32 v3, {1 << 14}, v2")
            nv = 4
        else:
            A("    v_lshrrev_b32 v2, 9, v0")
            A("    v_and_b32 v1, 511, v0")
            A("    v_lshlrev_b32 v2, 14, v2")
            A("    v_lshl_add_u32 v1, v1, 4, s16")
            A("    v_add_u32 v1, v1, v2")
            if numa == "local":
                A("    v_mov_b32 v0, v1")
            else:
                A("    v_lshl_add_u32 v0, v0, 4, s15")
            A(f"    v_add_u32 v1, {1 << 15}, v1")
            nv = 3
        addr = [(u, 0) for u in range(U)]
    else:
        wavemap = step is not None and step < block * 16
        if wavemap:
            g = step // 16
            A(f"    v_and_b32 v1, {g - 1}, v0")
            A(f"    v_lshrrev_b32 v0, {log2(g)}, v0")
            A(f"    v_lshl_add_u32 v0, v0, {log2(g * U)}, v1")
        step = step or block * 16
        per = max(1, step // (block * 16))
        if per == 1:
            A(f"    s_lshl_b32 s3, s2, {log2(per_wg)}")
        else:
            A(f"    s_and_b32 s15, s2, {per - 1}")
            A(f"    s_lshr_b32 s3, s2, {log2(per)}")
            A(f"    s_lshl_b32 s3, s3, {log2(step * U)}")
            A(f"    s_lshl_b32 s15, s15, {log2(block * 16)}")
            A(f"    s_or_b32 s3, s3, s15")
        assert step * U <= HALF
        A(f"    v_lshl_add_u32 v0, v0, 4, s3")
        perm = perm or list(range(U))
        addr = []
        nv = 1
        groups = {}
        if rot:
            A(f"    s_lshr_b32 s15, s2, {rot}")
            A(f"    s_and_b32 s15, s15, {U - 1}")
            A(f"    s_lshl_b32 s15, s15, {log2(step)}")
            A(f"    v_xor_b32 v0, s15, v0")
        for u in range(U):
            off = perm[u] * step
            g = off // 4096 if not rot else u
            if g not in groups:
                if off == 0:
                    groups[g] = 0
                else:
                    groups[g] = nv
                    if rot:
                        A(f"    v_xor_b32 v{nv}, {off}, v0")
                    else:
                        A(f"    v_add_u32 v{nv}, {g * 4096}, v0")
                    nv += 1
            addr.append((groups[g], 0 if rot else off - g * 4096))
    if sig == "vec":
        VS = nv
        nv += 1
        A(f"    v_mov_b32 v{VS}, 0")
    base = (nv + 3) // 4 * 4
    X = [base + 8 * u for u in range(U)]
    V = [base + 8 * u + 4 for u in range(U)]
    T = base + 8 * U
    nvgpr = T + 4
    A(f"    s_cmp_ge_u32 s3, {HALF}")
    A("    s_cselect_b32 s13, 0, 16")
    A("    s_mov_b32 s14, 0xffff0000")
    A("    s_waitcnt lgkmcnt(0)")
    stamp("karg")
    q = []
    def ld(kind, u):
        a, imm = addr[u]
        reg, sb = (V[u], 6) if kind == "v" else (X[u], 4)
        o = f" offset:{imm}" if imm else ""
        p = f" {ldpol}" if ldpol else ""
        A(f"    global_load_dwordx4 v[{reg}:{reg+3}], v{a}, s[{sb}:{sb+1}]{o}{p}")
        q.append((kind, u))
    def wait(op):
        n = len(q) - 1 - q.index(op)
        assert n <= 63
        A(f"    s_waitcnt vmcnt({n})")
    if sig == "first":
        A("    s_load_dword s12, s[8:9], 0")
    if sig == "vec":
        A(f"    global_load_dword v{VS}, v{VS}, s[8:9]")
        q.append(("sig", 0))
    if order == "vx":
        seq = [(k, u) for u in range(U) for k in "vx"]
    elif order == "vvxx":
        seq = [("v", u) for u in range(U)] + [("x", u) for u in range(U)]
    elif order == "xv":
        seq = [(k, u) for u in range(U) for k in "xv"]
    for i, (k, u) in enumerate(seq):
        ld(k, u)
        if (sig == "after2" and i == 1) or (sig == "after1" and i == 0) or (sig == "last" and i == len(seq) - 1):
            A("    s_load_dword s12, s[8:9], 0")
    stamp("issued")
    if sig == "vec":
        wait(("sig", 0))
        A(f"    v_readfirstlane_b32 s12, v{VS}")
    else:
        A("    s_waitcnt lgkmcnt(0)")
    stamp("sigma")
    A("    s_lshl_b32 s12, s12, s13")
    A("    s_and_b32 s12, s12, s14")
    done = set()
    def need(op):
        i = q.index(op)
        if all(q[j] in done for j in range(i + 1)):
            return
        wait(op)
        for j in range(i + 1):
            done.add(q[j])
    def mul(u):
        v = V[u]
        for d in range(4):
            t = T + 2 * (d & 1)
            A(f"    v_lshlrev_b32 v{t}, 16, v{v+d}")
            A(f"    v_and_b32 v{t+1}, s14, v{v+d}")
            A(f"    v_pk_mul_f32 v[{t}:{t+1}], v[{t}:{t+1}], s[12:13] op_sel_hi:[1,0]")
            A(f"    v_cvt_pk_bf16_f32 v{v+d}, v{t}, v{t+1}")
    def sub(u):
        x, v = X[u], V[u]
        for d in range(4):
            A(f"    v_lshlrev_b32 v{T}, 16, v{v+d}")
            A(f"    v_and_b32 v{T+1}, s14, v{v+d}")
            A(f"    v_lshlrev_b32 v{T+2}, 16, v{x+d}")
            A(f"    v_and_b32 v{T+3}, s14, v{x+d}")
            A(f"    v_pk_add_f32 v[{T}:{T+1}], v[{T+2}:{T+3}], v[{T}:{T+1}] neg_lo:[0,1] neg_hi:[0,1]")
            A(f"    v_cvt_pk_bf16_f32 v{x+d}, v{T}, v{T+1}")
    def st(u, pol=None):
        if nost:
            return
        a, imm = addr[u]
        o = f" offset:{imm}" if imm else ""
        pol = stpol if pol is None else pol
        p = f" {pol}" if pol else ""
        A(f"    global_store_dwordx4 v{a}, v[{X[u]}:{X[u]+3}], s[10:11]{o}{p}")
        q.append(("s", u))
    if order == "vvxx":
        for u in range(U):
            need(("v", u))
            if u == 0: stamp("first")
            mul(u)
        for u in range(U):
            need(("x", u))
            if u == U - 1: stamp("allld")
            sub(u)
            if not late:
                if u == U - 1: stamp("prest")
                st(u)
    elif barat is not None:
        held = []
        passed = False
        def gate(pt):
            nonlocal passed
            if pt == barat:
                A("    s_barrier")
                stamp("prest")
                passed = True
                for h in held:
                    st(h, pols[h] if pols else None)
                held.clear()
        gate("i")
        for u in range(U):
            need(("v", u))
            if u == 0: stamp("first")
            gate(f"v{u}")
            mul(u)
            need(("x", u))
            if u == U - 1: stamp("allld")
            gate(f"x{u}")
            sub(u)
            held.append(u)
            gate(f"c{u}")
            if passed or u < nearly:
                for h in held:
                    st(h, pols[h] if pols else None)
                held.clear()
        assert passed
    else:
        for u in range(U):
            need(("v", u))
            if u == 0: stamp("first")
            mul(u)
            need(("x", u))
            if u == U - 1: stamp("allld")
            sub(u)
            if late and u < nearly:
                st(u, estpol)
            if not late:
                if u == U - 1: stamp("prest")
                st(u)
                if wbl2 and u == wbl2[0]:
                    A(f"    s_and_b32 s15, s2, {wbl2[1]}")
                    A(f"    s_cmp_lg_u32 s15, {wbl2[2]}")
                    A(f"    s_cbranch_scc1 L_nowb")
                    A(f"    v_readfirstlane_b32 s15, v0")
                    A(f"    s_and_b32 s15, s15, {block * 16 - 1}")
                    A(f"    s_cmp_lg_u32 s15, 0")
                    A(f"    s_cbranch_scc1 L_nowb")
                    A(f"    buffer_wbl2 sc1")
                    A(f"    s_waitcnt vmcnt(0)")
                    A(f"L_nowb:")
    if late:
        if bar:
            A("    s_barrier")
        stamp("prest")
        for u in range(nearly, U):
            st(u)
    sgpr = 24 if numa else 16
    if stamps:
        A("    s_waitcnt vmcnt(0)")
        stamp("end")
        A("    s_getreg_b32 s34, hwreg(HW_REG_XCC_ID)")
        A("    s_getreg_b32 s35, hwreg(HW_REG_HW_ID)")
        A("    s_mov_b64 exec, 1")
        A("    s_waitcnt lgkmcnt(0)")
        A("    v_mov_b32 v0, s20")
        for i, r in enumerate(SR + [34, 35]):
            A(f"    v_mov_b32 v{4+i}, s{r}")
        A("    global_store_dwordx4 v0, v[4:7], s[22:23]")
        A("    global_store_dwordx4 v0, v[8:11], s[22:23] offset:16")
        sgpr = 40
    A("L_end:")
    A("    s_endpgm")
    A('.section .rodata,"a"')
    A(".p2align 6")
    A(f".amdhsa_kernel {NAME}_kernel")
    A(f"  .amdhsa_next_free_vgpr {nvgpr}")
    A(f"  .amdhsa_next_free_sgpr {sgpr}")
    A(f"  .amdhsa_accum_offset {(nvgpr + 3) // 4 * 4}")
    A("  .amdhsa_group_segment_fixed_size 0")
    A("  .amdhsa_kernarg_size 48")
    A("  .amdhsa_user_sgpr_count 2")
    A("  .amdhsa_user_sgpr_kernarg_segment_ptr 1")
    A("  .amdhsa_system_sgpr_workgroup_id_x 1")
    A("  .amdhsa_float_denorm_mode_32 3")
    A(".end_amdhsa_kernel")
    return "\n".join(L) + "\n"

if __name__ == "__main__":
    ap = argparse.ArgumentParser()
    ap.add_argument("out")
    ap.add_argument("--block", type=int, default=256)
    ap.add_argument("-U", type=int, default=4)
    ap.add_argument("--ld", default="nt")
    ap.add_argument("--st", default="")
    ap.add_argument("--sig", default="after2")
    ap.add_argument("--stamps", default=None)
    ap.add_argument("--late", action="store_true")
    ap.add_argument("--nost", action="store_true")
    ap.add_argument("--order", default="vx")
    ap.add_argument("--wbl2", default=None)
    ap.add_argument("--perm", default=None)
    ap.add_argument("--step", type=int, default=None)
    ap.add_argument("--rot", type=int, default=0)
    ap.add_argument("--prio", type=int, default=None)
    ap.add_argument("--bar", action="store_true")
    ap.add_argument("--nearly", type=int, default=0)
    ap.add_argument("--est", default="")
    ap.add_argument("--barat", default=None)
    ap.add_argument("--pols", default=None)
    ap.add_argument("--numa", default=None)
    ap.add_argument("-c", type=int, default=0)
    ap.add_argument("--bits", default=None)
    a = ap.parse_args()
    open(a.out, "w").write(gen(a.block, a.U, a.ld.replace(",", " ").replace("def", ""), a.st.replace(",", " "), a.sig,
        a.stamps and a.stamps.split(","), a.late, a.order,
        a.wbl2 and [int(t, 0) for t in a.wbl2.split(",")], a.perm and [int(t) for t in a.perm.split(",")],
        a.step, a.rot, a.nost, a.prio, a.bar, a.nearly, a.est.replace(',', ' '), a.barat, a.pols and [dict(d='', s='sc1', n='nt', t='sc1 nt', a='sc0 sc1')[c] for c in a.pols], a.numa, a.c, a.bits and a.bits.split(',')))
```

```python
import sys, argparse
from gen import NAME, TOTAL, HALF, HEADER, log2

def gen(block=256, U=4, ldpol="nt", stpol="", sig="after2", stamps=None, late=False, order="vx",
        wbl2=None, perm=None, step=None, rot=False, nost=False, prio=None, bar=False, nearly=0, estpol='', barat=None, pols=None, numa=None, cbit=0, bits=None, postc=0, endwb=None, warm=None):
    per_wg = block * 16 * U
    nwg = TOTAL // per_wg
    L = []
    A = L.append
    A(HEADER.rstrip("\n"))
    A(f"; @launch grid=({nwg},1,1) block=({block},1,1) lds=0")
    SR = [24, 26, 28, 30, 36, 32]
    if stamps:
        assert len(stamps) == 6
        A("; nstamp=6")
    def stamp(name):
        if stamps and name in stamps:
            r = SR[stamps.index(name)]
            A(f"    s_memrealtime s[{r}:{r+1}]")
    A('.amdgcn_target "amdgcn-amd-amdhsa--gfx950"')
    A(".text")
    A(f".globl {NAME}_kernel")
    A(".p2align 8")
    A(f".type {NAME}_kernel,@function")
    A(f"{NAME}_kernel:")
    stamp("entry")
    A("    s_load_dwordx8 s[4:11], s[0:1], 0")
    if stamps:
        A("    s_load_dwordx2 s[22:23], s[0:1], 40")
        A("    v_lshrrev_b32 v1, 6, v0")
        A(f"    s_lshl_b32 s21, s2, {log2(block // 64)}")
        A("    v_readfirstlane_b32 s20, v1")
        A("    s_add_u32 s20, s20, s21")
        A("    s_lshl_b32 s20, s20, 5")
    A(f"    s_cmp_ge_u32 s2, {nwg}")
    A("    s_cbranch_scc1 L_end")
    if endwb or warm:
        A("    v_readfirstlane_b32 s17, v0")
        A("    s_lshr_b32 s17, s17, 6")
    if prio is not None:
        A(f"    s_setprio {prio}")
    if bits:
        assert len(bits) == 13 and bits[-1][0] == "w"
        want = [f"t{i}" for i in range(6, log2(block))] + [f"u{i}" for i in range(log2(U))] + [f"w{i}" for i in range(log2(nwg))]
        assert sorted(want) == sorted(bits), (want, bits)
        def runs(kind):
            r = []
            i = 0
            while i < 13:
                if bits[i][0] == kind:
                    j = i
                    while j + 1 < 13 and bits[j + 1][0] == kind and int(bits[j + 1][1:]) == int(bits[j][1:]) + 1:
                        j += 1
                    r.append((int(bits[i][1:]), j - i + 1, 10 + i))
                    i = j + 1
                else:
                    i += 1
            return r
        first = True
        for src, n, dst in runs("w"):
            d = "s3" if first else "s15"
            A(f"    s_bfe_u32 {d}, s2, {hex(n << 16 | src)}")
            A(f"    s_lshl_b32 {d}, {d}, {dst}")
            if not first:
                A("    s_or_b32 s3, s3, s15")
            first = False
        tr = runs("t")
        if tr and tr[0][0] == 6 and tr[0][2] == 10:
            low = 6 + tr[0][1]
            tr = tr[1:]
        else:
            low = 6
        if tr:
            A(f"    v_and_b32 v1, {(1 << low) - 1}, v0")
            A(f"    v_lshl_add_u32 v1, v1, 4, s3")
            for k, (src, n, dst) in enumerate(tr):
                A(f"    v_bfe_u32 v2, v0, {src}, {n}")
                A(f"    v_lshl_add_u32 {'v0' if k == len(tr) - 1 else 'v1'}, v2, {dst}, v1")
        else:
            A(f"    v_lshl_add_u32 v0, v0, 4, s3")
        addr = []
        nv = 1
        groups = {0: 0}
        for u in range(U):
            off = sum(1 << (10 + bits.index(f"u{i}")) for i in range(log2(U)) if u >> i & 1)
            g = off // 4096
            if g not in groups:
                groups[g] = nv
                A(f"    v_add_u32 v{nv}, {g * 4096}, v0")
                nv += 1
            addr.append((groups[g], off - g * 4096))
        nv = max(nv, 3)
    elif numa:
        assert per_wg == 32768 and block in (512, 1024)
        A("    s_lshr_b32 s3, s2, 3")
        A("    s_lshl_b32 s3, s3, 2")
        A("    s_and_b32 s15, s2, 3")
        A("    s_or_b32 s3, s3, s15")
        A("    s_lshl_b32 s3, s3, 16")
        A("    s_lshr_b32 s15, s2, 2")
        A("    s_and_b32 s15, s15, 1                ; s")
        A("    s_lshr_b32 s16, s3, 21")
        A("    s_xor_b32 s16, s16, s15")
        if cbit:
            A("    s_xor_b32 s16, s16, 1")
        A("    s_and_b32 s16, s16, 1")
        A("    s_lshl_b32 s16, s16, 13              ; l<<13")
        A("    s_lshl_b32 s15, s15, 14              ; s<<14")
        A("    s_or_b32 s16, s16, s3")
        A("    s_or_b32 s15, s15, s3")
        addr = []
        if block == 512:
            if numa == "local":
                A("    v_lshl_add_u32 v0, v0, 4, s16")
                for u in range(1, 4):
                    A(f"    v_add_u32 v{u}, {u << 14}, v0")
            elif numa == "hyb":
                A("    v_lshl_add_u32 v2, v0, 4, s16")
                A("    v_lshl_add_u32 v0, v0, 4, s15")
                A(f"    v_add_u32 v1, {1 << 13}, v0")
                A(f"    v_add_u32 v2, {1 << 15}, v2")
                A(f"    v_add_u32 v3, {1 << 14}, v2")
            nv = 4
        else:
            A("    v_lshrrev_b32 v2, 9, v0")
            A("    v_and_b32 v1, 511, v0")
            A("    v_lshlrev_b32 v2, 14, v2")
            A("    v_lshl_add_u32 v1, v1, 4, s16")
            A("    v_add_u32 v1, v1, v2")
            if numa == "local":
                A("    v_mov_b32 v0, v1")
            else:
                A("    v_lshl_add_u32 v0, v0, 4, s15")
            A(f"    v_add_u32 v1, {1 << 15}, v1")
            nv = 3
        addr = [(u, 0) for u in range(U)]
    else:
        wavemap = step is not None and step < block * 16
        if wavemap:
            g = step // 16
            A(f"    v_and_b32 v1, {g - 1}, v0")
            A(f"    v_lshrrev_b32 v0, {log2(g)}, v0")
            A(f"    v_lshl_add_u32 v0, v0, {log2(g * U)}, v1")
        step = step or block * 16
        per = max(1, step // (block * 16))
        if per == 1:
            A(f"    s_lshl_b32 s3, s2, {log2(per_wg)}")
        else:
            A(f"    s_and_b32 s15, s2, {per - 1}")
            A(f"    s_lshr_b32 s3, s2, {log2(per)}")
            A(f"    s_lshl_b32 s3, s3, {log2(step * U)}")
            A(f"    s_lshl_b32 s15, s15, {log2(block * 16)}")
            A(f"    s_or_b32 s3, s3, s15")
        assert step * U <= HALF
        A(f"    v_lshl_add_u32 v0, v0, 4, s3")
        perm = perm or list(range(U))
        addr = []
        nv = 1
        groups = {}
        if rot:
            A(f"    s_lshr_b32 s15, s2, {rot}")
            A(f"    s_and_b32 s15, s15, {U - 1}")
            A(f"    s_lshl_b32 s15, s15, {log2(step)}")
            A(f"    v_xor_b32 v0, s15, v0")
        for u in range(U):
            off = perm[u] * step
            g = off // 4096 if not rot else u
            if g not in groups:
                if off == 0:
                    groups[g] = 0
                else:
                    groups[g] = nv
                    if rot:
                        A(f"    v_xor_b32 v{nv}, {off}, v0")
                    else:
                        A(f"    v_add_u32 v{nv}, {g * 4096}, v0")
                    nv += 1
            addr.append((groups[g], 0 if rot else off - g * 4096))
    if sig == "vec":
        VS = nv
        nv += 1
        A(f"    v_mov_b32 v{VS}, 0")
    base = (nv + 3) // 4 * 4
    X = [base + 8 * u for u in range(U)]
    V = [base + 8 * u + 4 for u in range(U)]
    T = base + 8 * U
    nvgpr = T + 4
    A(f"    s_cmp_ge_u32 s3, {HALF}")
    A("    s_cselect_b32 s13, 0, 16")
    A("    s_mov_b32 s14, 0xffff0000")
    A("    s_waitcnt lgkmcnt(0)")
    stamp("karg")
    q = []
    def ld(kind, u):
        a, imm = addr[u]
        reg, sb = (V[u], 6) if kind == "v" else (X[u], 4)
        o = f" offset:{imm}" if imm else ""
        p = f" {ldpol}" if ldpol else ""
        A(f"    global_load_dwordx4 v[{reg}:{reg+3}], v{a}, s[{sb}:{sb+1}]{o}{p}")
        q.append((kind, u))
    def wait(op):
        n = len(q) - 1 - q.index(op)
        assert n <= 63
        A(f"    s_waitcnt vmcnt({n})")
    if sig == "first":
        A("    s_load_dword s12, s[8:9], 0")
    if sig == "vec":
        A(f"    global_load_dword v{VS}, v{VS}, s[8:9]")
        q.append(("sig", 0))
    if order == "vx":
        seq = [(k, u) for u in range(U) for k in "vx"]
    elif order == "vvxx":
        seq = [("v", u) for u in range(U)] + [("x", u) for u in range(U)]
    elif order == "xv":
        seq = [(k, u) for u in range(U) for k in "xv"]
    for i, (k, u) in enumerate(seq):
        ld(k, u)
        if (sig == "after2" and i == 1) or (sig == "after1" and i == 0) or (sig == "last" and i == len(seq) - 1):
            A("    s_load_dword s12, s[8:9], 0")
    stamp("issued")
    if sig == "vec":
        wait(("sig", 0))
        A(f"    v_readfirstlane_b32 s12, v{VS}")
    else:
        A("    s_waitcnt lgkmcnt(0)")
    stamp("sigma")
    A("    s_lshl_b32 s12, s12, s13")
    A("    s_and_b32 s12, s12, s14")
    done = set()
    def need(op):
        i = q.index(op)
        if all(q[j] in done for j in range(i + 1)):
            return
        wait(op)
        for j in range(i + 1):
            done.add(q[j])
    def mul(u):
        v = V[u]
        for d in range(4):
            t = T + 2 * (d & 1)
            A(f"    v_lshlrev_b32 v{t}, 16, v{v+d}")
            A(f"    v_and_b32 v{t+1}, s14, v{v+d}")
            A(f"    v_pk_mul_f32 v[{t}:{t+1}], v[{t}:{t+1}], s[12:13] op_sel_hi:[1,0]")
            A(f"    v_cvt_pk_bf16_f32 v{v+d}, v{t}, v{t+1}")
    def sub(u):
        x, v = X[u], V[u]
        for d in range(4):
            A(f"    v_lshlrev_b32 v{T}, 16, v{v+d}")
            A(f"    v_and_b32 v{T+1}, s14, v{v+d}")
            A(f"    v_lshlrev_b32 v{T+2}, 16, v{x+d}")
            A(f"    v_and_b32 v{T+3}, s14, v{x+d}")
            A(f"    v_pk_add_f32 v[{T}:{T+1}], v[{T+2}:{T+3}], v[{T}:{T+1}] neg_lo:[0,1] neg_hi:[0,1]")
            A(f"    v_cvt_pk_bf16_f32 v{x+d}, v{T}, v{T+1}")
    def st(u, pol=None):
        if nost:
            return
        a, imm = addr[u]
        o = f" offset:{imm}" if imm else ""
        pol = stpol if pol is None else pol
        p = f" {pol}" if pol else ""
        A(f"    global_store_dwordx4 v{a}, v[{X[u]}:{X[u]+3}], s[10:11]{o}{p}")
        q.append(("s", u))
    if order == "vvxx":
        for u in range(U):
            need(("v", u))
            if u == 0: stamp("first")
            mul(u)
        for u in range(U):
            need(("x", u))
            if u == U - 1: stamp("allld")
            sub(u)
            if not late:
                if u == U - 1: stamp("prest")
                st(u)
    elif barat == "post":
        steps = [(k, u) for u in range(U) for k in ("mul", "sub")]
        pre, post = steps[:len(steps) - postc], steps[len(steps) - postc:]
        for k, u in pre:
            need(("v" if k == "mul" else "x", u))
            if k == "mul" and u == 0: stamp("first")
            (mul if k == "mul" else sub)(u)
            if warm is not None and k == "sub" and u == 0:
                A("    s_cmp_lg_u32 s17, 0")
                A("    s_cbranch_scc1 L_nowarm")
                a, imm = addr[0]
                A(f"    global_store_dwordx4 v{a}, v[{X[0]}:{X[0]+3}], s[10:11]{' offset:%d' % imm if imm else ''} {warm.replace('d', '')}")
                A("    s_waitcnt vmcnt(1)")
                A("L_nowarm:")
        need(("x", U - 1))
        stamp("allld")
        A("    s_barrier")
        stamp("prest")
        for k, u in post:
            (mul if k == "mul" else sub)(u)
        for u in range(U):
            if warm is not None and u == 0:
                A("    s_cmp_eq_u32 s17, 0")
                A("    s_cbranch_scc1 L_warmed")
            st(u, pols[u] if pols else None)
            if warm is not None and u == 0:
                A("L_warmed:")
    elif barat is not None:
        held = []
        passed = False
        def gate(pt):
            nonlocal passed
            if pt == barat:
                A("    s_barrier")
                stamp("prest")
                passed = True
                for h in held:
                    st(h, pols[h] if pols else None)
                held.clear()
        gate("i")
        for u in range(U):
            need(("v", u))
            if u == 0: stamp("first")
            gate(f"v{u}")
            mul(u)
            need(("x", u))
            if u == U - 1: stamp("allld")
            gate(f"x{u}")
            sub(u)
            held.append(u)
            gate(f"c{u}")
            if passed or u < nearly:
                for h in held:
                    st(h, pols[h] if pols else None)
                held.clear()
        assert passed
    else:
        for u in range(U):
            need(("v", u))
            if u == 0: stamp("first")
            mul(u)
            need(("x", u))
            if u == U - 1: stamp("allld")
            sub(u)
            if late and u < nearly:
                st(u, estpol)
            if not late:
                if u == U - 1: stamp("prest")
                st(u)
                if wbl2 and u == wbl2[0]:
                    A(f"    s_and_b32 s15, s2, {wbl2[1]}")
                    A(f"    s_cmp_lg_u32 s15, {wbl2[2]}")
                    A(f"    s_cbranch_scc1 L_nowb")
                    A(f"    v_readfirstlane_b32 s15, v0")
                    A(f"    s_and_b32 s15, s15, {block * 16 - 1}")
                    A(f"    s_cmp_lg_u32 s15, 0")
                    A(f"    s_cbranch_scc1 L_nowb")
                    A(f"    buffer_wbl2 sc1")
                    A(f"    s_waitcnt vmcnt(0)")
                    A(f"L_nowb:")
    if late:
        if bar:
            A("    s_barrier")
        stamp("prest")
        for u in range(nearly, U):
            st(u)
    if endwb:
        mask, val, wt, pol = endwb
        if wt & 2:
            A("    s_waitcnt vmcnt(0)")
        A("    s_barrier")
        stamp("prest")
        A(f"    s_and_b32 s15, s2, {mask}")
        A(f"    s_cmp_lg_u32 s15, {val}")
        A(f"    s_cbranch_scc1 L_nowb2")
        A(f"    s_cmp_lg_u32 s17, 0")
        A(f"    s_cbranch_scc1 L_nowb2")
        A(f"    buffer_wbl2 {pol}")
        if wt & 1:
            A(f"    s_waitcnt vmcnt(0)")
        A(f"L_nowb2:")
    sgpr = 24 if (numa or endwb or warm) else 16
    if stamps:
        A("    s_waitcnt vmcnt(0)")
        stamp("end")
        A("    s_getreg_b32 s34, hwreg(HW_REG_XCC_ID)")
        A("    s_getreg_b32 s35, hwreg(HW_REG_HW_ID)")
        A("    s_mov_b64 exec, 1")
        A("    s_waitcnt lgkmcnt(0)")
        A("    v_mov_b32 v0, s20")
        for i, r in enumerate(SR + [34, 35]):
            A(f"    v_mov_b32 v{4+i}, s{r}")
        A("    global_store_dwordx4 v0, v[4:7], s[22:23]")
        A("    global_store_dwordx4 v0, v[8:11], s[22:23] offset:16")
        sgpr = 40
    A("L_end:")
    A("    s_endpgm")
    A('.section .rodata,"a"')
    A(".p2align 6")
    A(f".amdhsa_kernel {NAME}_kernel")
    A(f"  .amdhsa_next_free_vgpr {nvgpr}")
    A(f"  .amdhsa_next_free_sgpr {sgpr}")
    A(f"  .amdhsa_accum_offset {(nvgpr + 3) // 4 * 4}")
    A("  .amdhsa_group_segment_fixed_size 0")
    A("  .amdhsa_kernarg_size 48")
    A("  .amdhsa_user_sgpr_count 2")
    A("  .amdhsa_user_sgpr_kernarg_segment_ptr 1")
    A("  .amdhsa_system_sgpr_workgroup_id_x 1")
    A("  .amdhsa_float_denorm_mode_32 3")
    A(".end_amdhsa_kernel")
    return "\n".join(L) + "\n"

if __name__ == "__main__":
    ap = argparse.ArgumentParser()
    ap.add_argument("out")
    ap.add_argument("--block", type=int, default=256)
    ap.add_argument("-U", type=int, default=4)
    ap.add_argument("--ld", default="nt")
    ap.add_argument("--st", default="")
    ap.add_argument("--sig", default="after2")
    ap.add_argument("--stamps", default=None)
    ap.add_argument("--late", action="store_true")
    ap.add_argument("--nost", action="store_true")
    ap.add_argument("--order", default="vx")
    ap.add_argument("--wbl2", default=None)
    ap.add_argument("--perm", default=None)
    ap.add_argument("--step", type=int, default=None)
    ap.add_argument("--rot", type=int, default=0)
    ap.add_argument("--prio", type=int, default=None)
    ap.add_argument("--bar", action="store_true")
    ap.add_argument("--nearly", type=int, default=0)
    ap.add_argument("--est", default="")
    ap.add_argument("--barat", default=None)
    ap.add_argument("--pols", default=None)
    ap.add_argument("--numa", default=None)
    ap.add_argument("-c", type=int, default=0)
    ap.add_argument("--bits", default=None)
    ap.add_argument("--postc", type=int, default=0)
    ap.add_argument("--endwb", default=None)
    ap.add_argument("--warm", default=None)
    a = ap.parse_args()
    open(a.out, "w").write(gen(a.block, a.U, a.ld.replace(",", " ").replace("def", ""), a.st.replace(",", " "), a.sig,
        a.stamps and a.stamps.split(","), a.late, a.order,
        a.wbl2 and [int(t, 0) for t in a.wbl2.split(",")], a.perm and [int(t) for t in a.perm.split(",")],
        a.step, a.rot, a.nost, a.prio, a.bar, a.nearly, a.est.replace(',', ' '), a.barat, a.pols and [dict(d='', s='sc1', n='nt', t='sc1 nt', a='sc0 sc1')[c] for c in a.pols], a.numa, a.c, a.bits and a.bits.split(','), a.postc,
        a.endwb and (lambda t: (int(t[0], 0), int(t[1], 0), int(t[2]), t[3].replace('+', ' ')))(a.endwb.split(',')), a.warm))
```

```python
import sys, argparse
from gen import NAME, TOTAL, HALF, HEADER, log2

def gen(block=256, U=4, ldpol="nt", stpol="", sig="after2", stamps=None, late=False, order="vx",
        wbl2=None, perm=None, step=None, rot=False, nost=False, prio=None, bar=False, nearly=0, estpol='', barat=None, pols=None, numa=None, cbit=0, bits=None, postc=0, endwb=None, warm=None, fast=0, compact=False):
    per_wg = block * 16 * U
    nwg = TOTAL // per_wg
    L = []
    A = L.append
    A(HEADER.rstrip("\n"))
    A(f"; @launch grid=({nwg},1,1) block=({block},1,1) lds=0")
    SR = [24, 26, 28, 30, 36, 32]
    if stamps:
        assert len(stamps) == 6
        A("; nstamp=6")
    def stamp(name):
        if stamps and name in stamps:
            r = SR[stamps.index(name)]
            A(f"    s_memrealtime s[{r}:{r+1}]")
    A('.amdgcn_target "amdgcn-amd-amdhsa--gfx950"')
    A(".text")
    A(f".globl {NAME}_kernel")
    A(".p2align 8")
    A(f".type {NAME}_kernel,@function")
    A(f"{NAME}_kernel:")
    stamp("entry")
    A("    s_load_dwordx8 s[4:11], s[0:1], 0")
    if stamps:
        A("    s_load_dwordx2 s[22:23], s[0:1], 40")
        A("    v_lshrrev_b32 v1, 6, v0")
        A(f"    s_lshl_b32 s21, s2, {log2(block // 64)}")
        A("    v_readfirstlane_b32 s20, v1")
        A("    s_add_u32 s20, s20, s21")
        A("    s_lshl_b32 s20, s20, 5")
    A(f"    s_cmpk_ge_u32 s2, {nwg}" if compact else f"    s_cmp_ge_u32 s2, {nwg}")
    A("    s_cbranch_scc1 L_end")
    if endwb or warm:
        A("    v_readfirstlane_b32 s17, v0")
        A("    s_lshr_b32 s17, s17, 6")
    if prio is not None:
        A(f"    s_setprio {prio}")
    if bits:
        assert len(bits) == 13 and bits[-1][0] == "w"
        want = [f"t{i}" for i in range(6, log2(block))] + [f"u{i}" for i in range(log2(U))] + [f"w{i}" for i in range(log2(nwg))]
        assert sorted(want) == sorted(bits), (want, bits)
        def runs(kind):
            r = []
            i = 0
            while i < 13:
                if bits[i][0] == kind:
                    j = i
                    while j + 1 < 13 and bits[j + 1][0] == kind and int(bits[j + 1][1:]) == int(bits[j][1:]) + 1:
                        j += 1
                    r.append((int(bits[i][1:]), j - i + 1, 10 + i))
                    i = j + 1
                else:
                    i += 1
            return r
        first = True
        for src, n, dst in runs("w"):
            d = "s3" if first else "s15"
            A(f"    s_bfe_u32 {d}, s2, {hex(n << 16 | src)}")
            A(f"    s_lshl_b32 {d}, {d}, {dst}")
            if not first:
                A("    s_or_b32 s3, s3, s15")
            first = False
        tr = runs("t")
        if tr and tr[0][0] == 6 and tr[0][2] == 10:
            low = 6 + tr[0][1]
            tr = tr[1:]
        else:
            low = 6
        if tr:
            A(f"    v_and_b32 v1, {(1 << low) - 1}, v0")
            A(f"    v_lshl_add_u32 v1, v1, 4, s3")
            for k, (src, n, dst) in enumerate(tr):
                A(f"    v_bfe_u32 v2, v0, {src}, {n}")
                A(f"    v_lshl_add_u32 {'v0' if k == len(tr) - 1 else 'v1'}, v2, {dst}, v1")
        else:
            A(f"    v_lshl_add_u32 v0, v0, 4, s3")
        addr = []
        nv = 1
        groups = {0: 0}
        for u in range(U):
            off = sum(1 << (10 + bits.index(f"u{i}")) for i in range(log2(U)) if u >> i & 1)
            g = off // 4096
            if g not in groups:
                groups[g] = nv
                A(f"    v_add_u32 v{nv}, {g * 4096}, v0")
                nv += 1
            addr.append((groups[g], off - g * 4096))
        nv = max(nv, 3)
    elif numa:
        assert per_wg == 32768 and block in (512, 1024)
        A("    s_lshr_b32 s3, s2, 3")
        A("    s_lshl_b32 s3, s3, 2")
        A("    s_and_b32 s15, s2, 3")
        A("    s_or_b32 s3, s3, s15")
        A("    s_lshl_b32 s3, s3, 16")
        A("    s_lshr_b32 s15, s2, 2")
        A("    s_and_b32 s15, s15, 1                ; s")
        A("    s_lshr_b32 s16, s3, 21")
        A("    s_xor_b32 s16, s16, s15")
        if cbit:
            A("    s_xor_b32 s16, s16, 1")
        A("    s_and_b32 s16, s16, 1")
        A("    s_lshl_b32 s16, s16, 13              ; l<<13")
        A("    s_lshl_b32 s15, s15, 14              ; s<<14")
        A("    s_or_b32 s16, s16, s3")
        A("    s_or_b32 s15, s15, s3")
        addr = []
        if block == 512:
            if numa == "local":
                A("    v_lshl_add_u32 v0, v0, 4, s16")
                for u in range(1, 4):
                    A(f"    v_add_u32 v{u}, {u << 14}, v0")
            elif numa == "hyb":
                A("    v_lshl_add_u32 v2, v0, 4, s16")
                A("    v_lshl_add_u32 v0, v0, 4, s15")
                A(f"    v_add_u32 v1, {1 << 13}, v0")
                A(f"    v_add_u32 v2, {1 << 15}, v2")
                A(f"    v_add_u32 v3, {1 << 14}, v2")
            nv = 4
        else:
            A("    v_lshrrev_b32 v2, 9, v0")
            A("    v_and_b32 v1, 511, v0")
            A("    v_lshlrev_b32 v2, 14, v2")
            A("    v_lshl_add_u32 v1, v1, 4, s16")
            A("    v_add_u32 v1, v1, v2")
            if numa == "local":
                A("    v_mov_b32 v0, v1")
            else:
                A("    v_lshl_add_u32 v0, v0, 4, s15")
            A(f"    v_add_u32 v1, {1 << 15}, v1")
            nv = 3
        addr = [(u, 0) for u in range(U)]
    else:
        wavemap = step is not None and step < block * 16
        if wavemap:
            g = step // 16
            A(f"    v_and_b32 v1, {g - 1}, v0")
            A(f"    v_lshrrev_b32 v0, {log2(g)}, v0")
            A(f"    v_lshl_add_u32 v0, v0, {log2(g * U)}, v1")
        step = step or block * 16
        per = max(1, step // (block * 16))
        if per == 1:
            A(f"    s_lshl_b32 s3, s2, {log2(per_wg)}")
        else:
            A(f"    s_and_b32 s15, s2, {per - 1}")
            A(f"    s_lshr_b32 s3, s2, {log2(per)}")
            A(f"    s_lshl_b32 s3, s3, {log2(step * U)}")
            A(f"    s_lshl_b32 s15, s15, {log2(block * 16)}")
            A(f"    s_or_b32 s3, s3, s15")
        assert step * U <= HALF
        A(f"    v_lshl_add_u32 v0, v0, 4, s3")
        perm = perm or list(range(U))
        addr = []
        nv = 1
        groups = {}
        if rot:
            A(f"    s_lshr_b32 s15, s2, {rot}")
            A(f"    s_and_b32 s15, s15, {U - 1}")
            A(f"    s_lshl_b32 s15, s15, {log2(step)}")
            A(f"    v_xor_b32 v0, s15, v0")
        for u in range(U):
            off = perm[u] * step
            g = off // 4096 if not rot else u
            if g not in groups:
                if off == 0:
                    groups[g] = 0
                else:
                    groups[g] = nv
                    if rot:
                        A(f"    v_xor_b32 v{nv}, {off}, v0")
                    else:
                        A(f"    v_add_u32 v{nv}, {g * 4096}, v0")
                    nv += 1
            addr.append((groups[g], 0 if rot else off - g * 4096))
    if sig == "vec":
        VS = nv
        nv += 1
        A(f"    v_mov_b32 v{VS}, 0")
    base = (nv + 3) // 4 * 4
    X = [base + 8 * u for u in range(U)]
    V = [base + 8 * u + 4 for u in range(U)]
    T = base + 8 * U
    nvgpr = T + 4
    if fast:
        P = T + 4
        nvgpr = T + 12
    def selup():
        A(f"    s_cmp_ge_u32 s3, {HALF}")
        A("    s_cselect_b32 s13, 0, 16")
        A("    s_mov_b32 s14, 0xffff0000")
    if not compact:
        selup()
    A("    s_waitcnt lgkmcnt(0)")
    stamp("karg")
    q = []
    def ld(kind, u):
        a, imm = addr[u]
        reg, sb = (V[u], 6) if kind == "v" else (X[u], 4)
        o = f" offset:{imm}" if imm else ""
        p = f" {ldpol}" if ldpol else ""
        A(f"    global_load_dwordx4 v[{reg}:{reg+3}], v{a}, s[{sb}:{sb+1}]{o}{p}")
        q.append((kind, u))
    def wait(op):
        n = len(q) - 1 - q.index(op)
        assert n <= 63
        A(f"    s_waitcnt vmcnt({n})")
    if sig == "first":
        A("    s_load_dword s12, s[8:9], 0")
    if sig == "vec":
        A(f"    global_load_dword v{VS}, v{VS}, s[8:9]")
        q.append(("sig", 0))
    if order == "vx":
        seq = [(k, u) for u in range(U) for k in "vx"]
    elif order == "vvxx":
        seq = [("v", u) for u in range(U)] + [("x", u) for u in range(U)]
    elif order == "xv":
        seq = [(k, u) for u in range(U) for k in "xv"]
    for i, (k, u) in enumerate(seq):
        ld(k, u)
        if (sig == "after2" and i == 1) or (sig == "after1" and i == 0) or (sig == "last" and i == len(seq) - 1):
            A("    s_load_dword s12, s[8:9], 0")
    stamp("issued")
    if compact:
        selup()
    if sig == "vec":
        wait(("sig", 0))
        A(f"    v_readfirstlane_b32 s12, v{VS}")
    else:
        A("    s_waitcnt lgkmcnt(0)")
    stamp("sigma")
    A("    s_lshl_b32 s12, s12, s13")
    A("    s_and_b32 s12, s12, s14")
    done = set()
    def need(op):
        i = q.index(op)
        if all(q[j] in done for j in range(i + 1)):
            return
        wait(op)
        for j in range(i + 1):
            done.add(q[j])
    def mul(u):
        v = V[u]
        if fast:
            for d in range(4):
                t = P + 2 * d
                A(f"    v_lshlrev_b32 v{t}, 16, v{v+d}")
                A(f"    v_and_b32 v{t+1}, s14, v{v+d}")
            for d in range(4):
                t = P + 2 * d
                A(f"    v_pk_mul_f32 v[{t}:{t+1}], v[{t}:{t+1}], s[12:13] op_sel_hi:[1,0]")
            for d in range(8):
                A(f"    v_cvt_pk_bf16_f32 v{P+d}, 0, v{P+d}")
            return
        for d in range(4):
            t = T + 2 * (d & 1)
            A(f"    v_lshlrev_b32 v{t}, 16, v{v+d}")
            A(f"    v_and_b32 v{t+1}, s14, v{v+d}")
            A(f"    v_pk_mul_f32 v[{t}:{t+1}], v[{t}:{t+1}], s[12:13] op_sel_hi:[1,0]")
            A(f"    v_cvt_pk_bf16_f32 v{v+d}, v{t}, v{t+1}")
    def sub(u):
        x, v = X[u], V[u]
        if fast:
            R = [v, v + 2, T, T + 2]
            for d in range(4):
                A(f"    v_lshlrev_b32 v{R[d]}, 16, v{x+d}")
                A(f"    v_and_b32 v{R[d]+1}, s14, v{x+d}")
            for d in range(4):
                A(f"    v_pk_add_f32 v[{R[d]}:{R[d]+1}], v[{R[d]}:{R[d]+1}], v[{P+2*d}:{P+2*d+1}] neg_lo:[0,1] neg_hi:[0,1]")
            for d in range(4):
                A(f"    v_cvt_pk_bf16_f32 v{x+d}, v{R[d]}, v{R[d]+1}")
            return
        for d in range(4):
            A(f"    v_lshlrev_b32 v{T}, 16, v{v+d}")
            A(f"    v_and_b32 v{T+1}, s14, v{v+d}")
            A(f"    v_lshlrev_b32 v{T+2}, 16, v{x+d}")
            A(f"    v_and_b32 v{T+3}, s14, v{x+d}")
            A(f"    v_pk_add_f32 v[{T}:{T+1}], v[{T+2}:{T+3}], v[{T}:{T+1}] neg_lo:[0,1] neg_hi:[0,1]")
            A(f"    v_cvt_pk_bf16_f32 v{x+d}, v{T}, v{T+1}")
    def st(u, pol=None):
        if nost:
            return
        a, imm = addr[u]
        o = f" offset:{imm}" if imm else ""
        pol = stpol if pol is None else pol
        p = f" {pol}" if pol else ""
        A(f"    global_store_dwordx4 v{a}, v[{X[u]}:{X[u]+3}], s[10:11]{o}{p}")
        q.append(("s", u))
    if order == "vvxx":
        for u in range(U):
            need(("v", u))
            if u == 0: stamp("first")
            mul(u)
        for u in range(U):
            need(("x", u))
            if u == U - 1: stamp("allld")
            sub(u)
            if not late:
                if u == U - 1: stamp("prest")
                st(u)
    elif barat == "post":
        steps = [(k, u) for u in range(U) for k in ("mul", "sub")]
        pre, post = steps[:len(steps) - postc], steps[len(steps) - postc:]
        for k, u in pre:
            need(("v" if k == "mul" else "x", u))
            if k == "mul" and u == 0: stamp("first")
            (mul if k == "mul" else sub)(u)
            if warm is not None and k == "sub" and u == 0:
                A("    s_cmp_lg_u32 s17, 0")
                A("    s_cbranch_scc1 L_nowarm")
                a, imm = addr[0]
                A(f"    global_store_dwordx4 v{a}, v[{X[0]}:{X[0]+3}], s[10:11]{' offset:%d' % imm if imm else ''} {warm.replace('d', '')}")
                A("    s_waitcnt vmcnt(1)")
                A("L_nowarm:")
        need(("x", U - 1))
        stamp("allld")
        A("    s_barrier")
        stamp("prest")
        for k, u in post:
            (mul if k == "mul" else sub)(u)
        for u in range(U):
            if warm is not None and u == 0:
                A("    s_cmp_eq_u32 s17, 0")
                A("    s_cbranch_scc1 L_warmed")
            st(u, pols[u] if pols else None)
            if warm is not None and u == 0:
                A("L_warmed:")
    elif barat is not None:
        held = []
        passed = False
        def gate(pt):
            nonlocal passed
            if pt == barat:
                A("    s_barrier")
                stamp("prest")
                passed = True
                for h in held:
                    st(h, pols[h] if pols else None)
                held.clear()
        gate("i")
        for u in range(U):
            need(("v", u))
            if u == 0: stamp("first")
            gate(f"v{u}")
            mul(u)
            need(("x", u))
            if u == U - 1: stamp("allld")
            gate(f"x{u}")
            sub(u)
            held.append(u)
            gate(f"c{u}")
            if passed or u < nearly:
                for h in held:
                    st(h, pols[h] if pols else None)
                held.clear()
        assert passed
    else:
        for u in range(U):
            need(("v", u))
            if u == 0: stamp("first")
            mul(u)
            need(("x", u))
            if u == U - 1: stamp("allld")
            sub(u)
            if late and u < nearly:
                st(u, estpol)
            if not late:
                if u == U - 1: stamp("prest")
                st(u)
                if wbl2 and u == wbl2[0]:
                    A(f"    s_and_b32 s15, s2, {wbl2[1]}")
                    A(f"    s_cmp_lg_u32 s15, {wbl2[2]}")
                    A(f"    s_cbranch_scc1 L_nowb")
                    A(f"    v_readfirstlane_b32 s15, v0")
                    A(f"    s_and_b32 s15, s15, {block * 16 - 1}")
                    A(f"    s_cmp_lg_u32 s15, 0")
                    A(f"    s_cbranch_scc1 L_nowb")
                    A(f"    buffer_wbl2 sc1")
                    A(f"    s_waitcnt vmcnt(0)")
                    A(f"L_nowb:")
    if late:
        if bar:
            A("    s_barrier")
        stamp("prest")
        for u in range(nearly, U):
            st(u)
    if endwb:
        mask, val, wt, pol = endwb
        if wt & 2:
            A("    s_waitcnt vmcnt(0)")
        A("    s_barrier")
        stamp("prest")
        A(f"    s_and_b32 s15, s2, {mask}")
        A(f"    s_cmp_lg_u32 s15, {val}")
        A(f"    s_cbranch_scc1 L_nowb2")
        A(f"    s_cmp_lg_u32 s17, 0")
        A(f"    s_cbranch_scc1 L_nowb2")
        A(f"    buffer_wbl2 {pol}")
        if wt & 1:
            A(f"    s_waitcnt vmcnt(0)")
        A(f"L_nowb2:")
    sgpr = 24 if (numa or endwb or warm) else 16
    if stamps:
        A("    s_waitcnt vmcnt(0)")
        stamp("end")
        A("    s_getreg_b32 s34, hwreg(HW_REG_XCC_ID)")
        A("    s_getreg_b32 s35, hwreg(HW_REG_HW_ID)")
        A("    s_mov_b64 exec, 1")
        A("    s_waitcnt lgkmcnt(0)")
        A("    v_mov_b32 v0, s20")
        for i, r in enumerate(SR + [34, 35]):
            A(f"    v_mov_b32 v{4+i}, s{r}")
        A("    global_store_dwordx4 v0, v[4:7], s[22:23]")
        A("    global_store_dwordx4 v0, v[8:11], s[22:23] offset:16")
        sgpr = 40
    A("L_end:")
    A("    s_endpgm")
    A('.section .rodata,"a"')
    A(".p2align 6")
    A(f".amdhsa_kernel {NAME}_kernel")
    A(f"  .amdhsa_next_free_vgpr {nvgpr}")
    A(f"  .amdhsa_next_free_sgpr {sgpr}")
    A(f"  .amdhsa_accum_offset {(nvgpr + 3) // 4 * 4}")
    A("  .amdhsa_group_segment_fixed_size 0")
    A("  .amdhsa_kernarg_size 48")
    A("  .amdhsa_user_sgpr_count 2")
    A("  .amdhsa_user_sgpr_kernarg_segment_ptr 1")
    A("  .amdhsa_system_sgpr_workgroup_id_x 1")
    A("  .amdhsa_float_denorm_mode_32 3")
    A(".end_amdhsa_kernel")
    return "\n".join(L) + "\n"

if __name__ == "__main__":
    ap = argparse.ArgumentParser()
    ap.add_argument("out")
    ap.add_argument("--block", type=int, default=256)
    ap.add_argument("-U", type=int, default=4)
    ap.add_argument("--ld", default="nt")
    ap.add_argument("--st", default="")
    ap.add_argument("--sig", default="after2")
    ap.add_argument("--stamps", default=None)
    ap.add_argument("--late", action="store_true")
    ap.add_argument("--nost", action="store_true")
    ap.add_argument("--order", default="vx")
    ap.add_argument("--wbl2", default=None)
    ap.add_argument("--perm", default=None)
    ap.add_argument("--step", type=int, default=None)
    ap.add_argument("--rot", type=int, default=0)
    ap.add_argument("--prio", type=int, default=None)
    ap.add_argument("--bar", action="store_true")
    ap.add_argument("--nearly", type=int, default=0)
    ap.add_argument("--est", default="")
    ap.add_argument("--barat", default=None)
    ap.add_argument("--pols", default=None)
    ap.add_argument("--numa", default=None)
    ap.add_argument("-c", type=int, default=0)
    ap.add_argument("--bits", default=None)
    ap.add_argument("--postc", type=int, default=0)
    ap.add_argument("--endwb", default=None)
    ap.add_argument("--warm", default=None)
    ap.add_argument("--fast", type=int, default=0)
    ap.add_argument("--compact", action="store_true")
    a = ap.parse_args()
    open(a.out, "w").write(gen(a.block, a.U, a.ld.replace(",", " ").replace("def", ""), a.st.replace(",", " "), a.sig,
        a.stamps and a.stamps.split(","), a.late, a.order,
        a.wbl2 and [int(t, 0) for t in a.wbl2.split(",")], a.perm and [int(t) for t in a.perm.split(",")],
        a.step, a.rot, a.nost, a.prio, a.bar, a.nearly, a.est.replace(',', ' '), a.barat, a.pols and [dict(d='', s='sc1', n='nt', t='sc1 nt', a='sc0 sc1')[c] for c in a.pols], a.numa, a.c, a.bits and a.bits.split(','), a.postc,
        a.endwb and (lambda t: (int(t[0], 0), int(t[1], 0), int(t[2]), t[3].replace('+', ' ')))(a.endwb.split(',')), a.warm, a.fast, a.compact))
```

```python
N = "standalone__consistency_rf_step__diffusion"
L = []
A = L.append
ref = open(f"cdna_kernels/{N}.s.ref").read().split("\n")
for l in ref[:9]:
    A(l)
A("; @launch grid=(256,1,1) block=(1024,1,1) lds=0")
A(""";
;
;
; v[24:31] t as f32   v[20:23] scratch""")
A('.amdgcn_target "amdgcn-amd-amdhsa--gfx950"')
A(".text")
A(f".globl {N}_kernel")
A(".p2align 8")
A(f".type {N}_kernel,@function")
A(f"{N}_kernel:")
def I(s, c=None):
    A(f"    {s:<60}; {c}" if c else f"    {s}")
I("s_load_dwordx8 s[4:11], s[0:1], 0", "x, v, sigma, out pointers")
I("s_cmpk_ge_u32 s2, 256", "extra workgroups exit")
I("s_cbranch_scc1 L_end")
I("s_lshl_b32 s3, s2, 15", "workgroup base, 32 KiB each")
I("v_lshl_add_u32 v0, v0, 4, s3", "chunk 0 offset")
I("v_add_u32 v1, 16384, v0", "chunk 1 offset")
I("s_waitcnt lgkmcnt(0)")
I("global_load_dwordx4 v[8:11], v0, s[6:7] nt", "v, chunk 0")
I("global_load_dwordx4 v[4:7], v0, s[4:5] nt", "x, chunk 0")
I("s_load_dword s12, s[8:9], 0", "both sigmas (2 x bf16)")
I("global_load_dwordx4 v[16:19], v1, s[6:7] nt", "v, chunk 1")
I("global_load_dwordx4 v[12:15], v1, s[4:5] nt", "x, chunk 1")
I("s_cmp_ge_u32 s3, 4194304", "batch 1 starts at 4 MiB")
I("s_cselect_b32 s13, 0, 16")
I("s_mov_b32 s14, 0xffff0000")
I("s_waitcnt lgkmcnt(0)")
I("s_lshl_b32 s12, s12, s13")
I("s_and_b32 s12, s12, s14", "sigma[b] as f32")
P, T = 24, 20
def mul(v):
    for d in range(4):
        I(f"v_lshlrev_b32 v{P+2*d}, 16, v{v+d}")
        I(f"v_and_b32 v{P+2*d+1}, s14, v{v+d}")
    for d in range(4):
        I(f"v_pk_mul_f32 v[{P+2*d}:{P+2*d+1}], v[{P+2*d}:{P+2*d+1}], s[12:13] op_sel_hi:[1,0]")
    for d in range(8):
        I(f"v_cvt_pk_bf16_f32 v{P+d}, 0, v{P+d}", "round to bf16 in the high half = t as f32" if d == 0 else None)
def sub(x, v):
    R = [v, v + 2, T, T + 2]
    for d in range(4):
        I(f"v_lshlrev_b32 v{R[d]}, 16, v{x+d}")
        I(f"v_and_b32 v{R[d]+1}, s14, v{x+d}")
    for d in range(4):
        I(f"v_pk_add_f32 v[{R[d]}:{R[d]+1}], v[{R[d]}:{R[d]+1}], v[{P+2*d}:{P+2*d+1}] neg_lo:[0,1] neg_hi:[0,1]")
    for d in range(4):
        I(f"v_cvt_pk_bf16_f32 v{x+d}, v{R[d]}, v{R[d]+1}")
I("s_waitcnt vmcnt(3)")
mul(8)
I("s_waitcnt vmcnt(2)")
sub(4, 8)
I("s_waitcnt vmcnt(1)")
mul(16)
I("s_waitcnt vmcnt(0)")
I("s_barrier", "every load of this CU has landed: write phase starts")
sub(12, 16)
I("global_store_dwordx4 v0, v[4:7], s[10:11] nt")
I("global_store_dwordx4 v1, v[12:15], s[10:11] nt")
A("L_end:")
I("s_endpgm")
A('.section .rodata,"a"')
A(".p2align 6")
A(f".amdhsa_kernel {N}_kernel")
for l in ("next_free_vgpr 32", "next_free_sgpr 16", "accum_offset 32", "group_segment_fixed_size 0", "kernarg_size 48",
          "user_sgpr_count 2", "user_sgpr_kernarg_segment_ptr 1", "system_sgpr_workgroup_id_x 1", "float_denorm_mode_32 3"):
    A(f"  .amdhsa_{l}")
A(".end_amdhsa_kernel")
open(f"cdna_kernels/{N}.s", "w").write("\n".join(L) + "\n")
```

```python
import sys, argparse
from gen import NAME, TOTAL, HALF, HEADER, log2

def gen(block=256, U=4, ldpol="nt", stpol="", sig="after2", stamps=None, late=False, order="vx",
        wbl2=None, perm=None, step=None, rot=False, nost=False, prio=None, bar=False, nearly=0, estpol='', barat=None, pols=None, numa=None, cbit=0, bits=None, postc=0, endwb=None, warm=None, fast=0, compact=False, hold=None, depth=0, lprio=None, lbar=None, inter=False, ufun=None, umask=0):
    per_wg = block * 16 * U
    nwg = TOTAL // per_wg
    L = []
    A = L.append
    A(HEADER.rstrip("\n"))
    A(f"; @launch grid=({nwg},1,1) block=({block},1,1) lds=0")
    SR = [24, 26, 28, 30, 36, 32]
    if stamps:
        assert len(stamps) == 6
        A("; nstamp=6")
    def stamp(name):
        if stamps and name in stamps:
            r = SR[stamps.index(name)]
            A(f"    s_memrealtime s[{r}:{r+1}]")
    A('.amdgcn_target "amdgcn-amd-amdhsa--gfx950"')
    A(".text")
    A(f".globl {NAME}_kernel")
    A(".p2align 8")
    A(f".type {NAME}_kernel,@function")
    A(f"{NAME}_kernel:")
    stamp("entry")
    A("    s_load_dwordx8 s[4:11], s[0:1], 0")
    if stamps:
        A("    s_load_dwordx2 s[22:23], s[0:1], 40")
        A("    v_lshrrev_b32 v1, 6, v0")
        A(f"    s_lshl_b32 s21, s2, {log2(block // 64)}")
        A("    v_readfirstlane_b32 s20, v1")
        A("    s_add_u32 s20, s20, s21")
        A("    s_lshl_b32 s20, s20, 5")
    A(f"    s_cmpk_ge_u32 s2, {nwg}" if compact else f"    s_cmp_ge_u32 s2, {nwg}")
    A("    s_cbranch_scc1 L_end")
    if endwb or warm:
        A("    v_readfirstlane_b32 s17, v0")
        A("    s_lshr_b32 s17, s17, 6")
    if prio is not None:
        A(f"    s_setprio {prio}")
    if bits:
        assert len(bits) == 13 and bits[-1][0] in "wu"
        want = [f"t{i}" for i in range(6, log2(block))] + [f"u{i}" for i in range(log2(U))] + [f"w{i}" for i in range(log2(nwg))]
        assert sorted(want) == sorted(bits), (want, bits)
        def runs(kind):
            r = []
            i = 0
            while i < 13:
                if bits[i][0] == kind:
                    j = i
                    while j + 1 < 13 and bits[j + 1][0] == kind and int(bits[j + 1][1:]) == int(bits[j][1:]) + 1:
                        j += 1
                    r.append((int(bits[i][1:]), j - i + 1, 10 + i))
                    i = j + 1
                else:
                    i += 1
            return r
        first = True
        for src, n, dst in runs("w"):
            d = "s3" if first else "s15"
            A(f"    s_bfe_u32 {d}, s2, {hex(n << 16 | src)}")
            A(f"    s_lshl_b32 {d}, {d}, {dst}")
            if not first:
                A("    s_or_b32 s3, s3, s15")
            first = False
        if ufun:
            piv = 10 + bits.index("u0")
            for b in ufun:
                assert bits[b - 10][0] == "w"
                A(f"    s_bfe_u32 s15, s2, {hex(1 << 16 | int(bits[b - 10][1:]))}")
                A(f"    s_lshl_b32 s15, s15, {piv}")
                A("    s_xor_b32 s3, s3, s15")
        tr = runs("t")
        if tr and tr[0][0] == 6 and tr[0][2] == 10:
            low = 6 + tr[0][1]
            tr = tr[1:]
        else:
            low = 6
        if tr:
            A(f"    v_and_b32 v1, {(1 << low) - 1}, v0")
            A(f"    v_lshl_add_u32 v1, v1, 4, s3")
            for k, (src, n, dst) in enumerate(tr):
                A(f"    v_bfe_u32 v2, v0, {src}, {n}")
                A(f"    v_lshl_add_u32 {'v0' if k == len(tr) - 1 else 'v1'}, v2, {dst}, v1")
        else:
            A(f"    v_lshl_add_u32 v0, v0, 4, s3")
        addr = []
        nv = 1
        groups = {0: 0}
        for u in range(U):
            off = sum(1 << (10 + bits.index(f"u{i}")) for i in range(log2(U)) if u >> i & 1)
            if ufun or umask:
                if u & 1:
                    off ^= umask
                if off == 0:
                    addr.append((0, 0))
                else:
                    A(f"    v_xor_b32 v{nv}, {off}, v0")
                    addr.append((nv, 0))
                    nv += 1
                continue
            g = off // 4096
            if g not in groups:
                groups[g] = nv
                A(f"    v_add_u32 v{nv}, {g * 4096}, v0")
                nv += 1
            addr.append((groups[g], off - g * 4096))
        nv = max(nv, 3)
    elif numa:
        assert per_wg == 32768 and block in (512, 1024)
        A("    s_lshr_b32 s3, s2, 3")
        A("    s_lshl_b32 s3, s3, 2")
        A("    s_and_b32 s15, s2, 3")
        A("    s_or_b32 s3, s3, s15")
        A("    s_lshl_b32 s3, s3, 16")
        A("    s_lshr_b32 s15, s2, 2")
        A("    s_and_b32 s15, s15, 1                ; s")
        A("    s_lshr_b32 s16, s3, 21")
        A("    s_xor_b32 s16, s16, s15")
        if cbit:
            A("    s_xor_b32 s16, s16, 1")
        A("    s_and_b32 s16, s16, 1")
        A("    s_lshl_b32 s16, s16, 13              ; l<<13")
        A("    s_lshl_b32 s15, s15, 14              ; s<<14")
        A("    s_or_b32 s16, s16, s3")
        A("    s_or_b32 s15, s15, s3")
        addr = []
        if block == 512:
            if numa == "local":
                A("    v_lshl_add_u32 v0, v0, 4, s16")
                for u in range(1, 4):
                    A(f"    v_add_u32 v{u}, {u << 14}, v0")
            elif numa == "hyb":
                A("    v_lshl_add_u32 v2, v0, 4, s16")
                A("    v_lshl_add_u32 v0, v0, 4, s15")
                A(f"    v_add_u32 v1, {1 << 13}, v0")
                A(f"    v_add_u32 v2, {1 << 15}, v2")
                A(f"    v_add_u32 v3, {1 << 14}, v2")
            nv = 4
        else:
            A("    v_lshrrev_b32 v2, 9, v0")
            A("    v_and_b32 v1, 511, v0")
            A("    v_lshlrev_b32 v2, 14, v2")
            A("    v_lshl_add_u32 v1, v1, 4, s16")
            A("    v_add_u32 v1, v1, v2")
            if numa == "local":
                A("    v_mov_b32 v0, v1")
            else:
                A("    v_lshl_add_u32 v0, v0, 4, s15")
            A(f"    v_add_u32 v1, {1 << 15}, v1")
            nv = 3
        addr = [(u, 0) for u in range(U)]
    else:
        wavemap = step is not None and step < block * 16
        if wavemap:
            g = step // 16
            A(f"    v_and_b32 v1, {g - 1}, v0")
            A(f"    v_lshrrev_b32 v0, {log2(g)}, v0")
            A(f"    v_lshl_add_u32 v0, v0, {log2(g * U)}, v1")
        step = step or block * 16
        per = max(1, step // (block * 16))
        if per == 1:
            A(f"    s_lshl_b32 s3, s2, {log2(per_wg)}")
        else:
            A(f"    s_and_b32 s15, s2, {per - 1}")
            A(f"    s_lshr_b32 s3, s2, {log2(per)}")
            A(f"    s_lshl_b32 s3, s3, {log2(step * U)}")
            A(f"    s_lshl_b32 s15, s15, {log2(block * 16)}")
            A(f"    s_or_b32 s3, s3, s15")
        assert step * U <= HALF
        A(f"    v_lshl_add_u32 v0, v0, 4, s3")
        perm = perm or list(range(U))
        addr = []
        nv = 1
        groups = {}
        if rot:
            A(f"    s_lshr_b32 s15, s2, {rot}")
            A(f"    s_and_b32 s15, s15, {U - 1}")
            A(f"    s_lshl_b32 s15, s15, {log2(step)}")
            A(f"    v_xor_b32 v0, s15, v0")
        for u in range(U):
            off = perm[u] * step
            g = off // 4096 if not rot else u
            if g not in groups:
                if off == 0:
                    groups[g] = 0
                else:
                    groups[g] = nv
                    if rot:
                        A(f"    v_xor_b32 v{nv}, {off}, v0")
                    else:
                        A(f"    v_add_u32 v{nv}, {g * 4096}, v0")
                    nv += 1
            addr.append((groups[g], 0 if rot else off - g * 4096))
    if sig == "vec":
        VS = nv
        nv += 1
        A(f"    v_mov_b32 v{VS}, 0")
    base = (nv + 3) // 4 * 4
    X = [base + 8 * u for u in range(U)]
    V = [base + 8 * u + 4 for u in range(U)]
    T = base + 8 * U
    nvgpr = T + 4
    if fast:
        P = T + 4
        nvgpr = T + 12
    ubatch = int(bits[-1][1:]) if bits and bits[-1][0] == "u" else None
    def selup():
        if ubatch is not None:
            if ufun and ubatch == 0:
                A(f"    s_cmp_ge_u32 s3, {HALF}")
                A("    s_cselect_b32 s15, 16, 0")
            A("    s_mov_b32 s14, 0xffff0000")
            return
        A(f"    s_cmp_ge_u32 s3, {HALF}")
        A("    s_cselect_b32 s13, 0, 16")
        A("    s_mov_b32 s14, 0xffff0000")
    if not compact:
        selup()
    A("    s_waitcnt lgkmcnt(0)")
    stamp("karg")
    q = []
    def ld(kind, u):
        a, imm = addr[u]
        reg, sb = (V[u], 6) if kind == "v" else (X[u], 4)
        o = f" offset:{imm}" if imm else ""
        p = f" {ldpol}" if ldpol else ""
        A(f"    global_load_dwordx4 v[{reg}:{reg+3}], v{a}, s[{sb}:{sb+1}]{o}{p}")
        q.append((kind, u))
    def wait(op):
        n = len(q) - 1 - q.index(op)
        assert n <= 63
        A(f"    s_waitcnt vmcnt({n})")
    if sig == "first":
        A("    s_load_dword s12, s[8:9], 0")
    if sig == "vec":
        A(f"    global_load_dword v{VS}, v{VS}, s[8:9]")
        q.append(("sig", 0))
    if order == "vx":
        seq = [(k, u) for u in range(U) for k in "vx"]
    elif order == "vvxx":
        seq = [("v", u) for u in range(U)] + [("x", u) for u in range(U)]
    elif order == "xv":
        seq = [(k, u) for u in range(U) for k in "xv"]
    for i, (k, u) in enumerate(seq):
        if depth and i >= depth:
            if inter:
                break
            A(f"    s_waitcnt vmcnt({depth - 1})")
        if lprio and (i == 0 or lprio[i] != lprio[i - 1]):
            A(f"    s_setprio {lprio[i]}")
        if lbar and i in lbar:
            A("    s_barrier")
        ld(k, u)
        if (sig == "after2" and i == 1) or (sig == "after1" and i == 0) or (sig == "last" and i == len(seq) - 1):
            A("    s_load_dword s12, s[8:9], 0")
    stamp("issued")
    if compact:
        selup()
    if sig == "vec":
        wait(("sig", 0))
        A(f"    v_readfirstlane_b32 s12, v{VS}")
    else:
        A("    s_waitcnt lgkmcnt(0)")
    stamp("sigma")
    if ubatch is not None:
        if ufun and ubatch == 0:
            A("    s_mov_b32 s13, s12")
            A("    s_lshr_b64 s[12:13], s[12:13], s15")
        A("    s_and_b32 s13, s12, s14")
        A("    s_lshl_b32 s12, s12, 16")
    else:
        A("    s_lshl_b32 s12, s12, s13")
        A("    s_and_b32 s12, s12, s14")
    done = set()
    def need(op):
        if inter:
            i = seq.index(op)
            assert op in q
            if op not in done:
                wait(op)
                for j in range(q.index(op) + 1):
                    done.add(q[j])
            nl = sum(1 for z in q if z[0] in "vx")
            while nl < len(seq) and nl - (i + 1) < depth:
                ld(*seq[nl]); nl += 1
            return
        i = q.index(op)
        if all(q[j] in done for j in range(i + 1)):
            return
        wait(op)
        for j in range(i + 1):
            done.add(q[j])
    def mul(u):
        v = V[u]
        if fast:
            for d in range(4):
                t = P + 2 * d
                A(f"    v_lshlrev_b32 v{t}, 16, v{v+d}")
                A(f"    v_and_b32 v{t+1}, s14, v{v+d}")
            for d in range(4):
                t = P + 2 * d
                sel = "op_sel:[0,1] op_sel_hi:[1,1]" if ubatch is not None and u >> ubatch & 1 else "op_sel_hi:[1,0]"
                A(f"    v_pk_mul_f32 v[{t}:{t+1}], v[{t}:{t+1}], s[12:13] {sel}")
            for d in range(8):
                A(f"    v_cvt_pk_bf16_f32 v{P+d}, 0, v{P+d}")
            return
        for d in range(4):
            t = T + 2 * (d & 1)
            A(f"    v_lshlrev_b32 v{t}, 16, v{v+d}")
            A(f"    v_and_b32 v{t+1}, s14, v{v+d}")
            A(f"    v_pk_mul_f32 v[{t}:{t+1}], v[{t}:{t+1}], s[12:13] op_sel_hi:[1,0]")
            A(f"    v_cvt_pk_bf16_f32 v{v+d}, v{t}, v{t+1}")
    def sub(u):
        x, v = X[u], V[u]
        if fast:
            R = [v, v + 2, T, T + 2]
            for d in range(4):
                A(f"    v_lshlrev_b32 v{R[d]}, 16, v{x+d}")
                A(f"    v_and_b32 v{R[d]+1}, s14, v{x+d}")
            for d in range(4):
                A(f"    v_pk_add_f32 v[{R[d]}:{R[d]+1}], v[{R[d]}:{R[d]+1}], v[{P+2*d}:{P+2*d+1}] neg_lo:[0,1] neg_hi:[0,1]")
            for d in range(4):
                A(f"    v_cvt_pk_bf16_f32 v{x+d}, v{R[d]}, v{R[d]+1}")
            return
        for d in range(4):
            A(f"    v_lshlrev_b32 v{T}, 16, v{v+d}")
            A(f"    v_and_b32 v{T+1}, s14, v{v+d}")
            A(f"    v_lshlrev_b32 v{T+2}, 16, v{x+d}")
            A(f"    v_and_b32 v{T+3}, s14, v{x+d}")
            A(f"    v_pk_add_f32 v[{T}:{T+1}], v[{T+2}:{T+3}], v[{T}:{T+1}] neg_lo:[0,1] neg_hi:[0,1]")
            A(f"    v_cvt_pk_bf16_f32 v{x+d}, v{T}, v{T+1}")
    def st(u, pol=None):
        if nost:
            return
        a, imm = addr[u]
        o = f" offset:{imm}" if imm else ""
        pol = stpol if pol is None else pol
        p = f" {pol}" if pol else ""
        A(f"    global_store_dwordx4 v{a}, v[{X[u]}:{X[u]+3}], s[10:11]{o}{p}")
        q.append(("s", u))
    if order == "vvxx" and barat is None:
        for u in range(U):
            need(("v", u))
            if u == 0: stamp("first")
            mul(u)
        for u in range(U):
            need(("x", u))
            if u == U - 1: stamp("allld")
            sub(u)
            if not late:
                if u == U - 1: stamp("prest")
                st(u)
    elif barat == "post":
        steps = [(k, u) for u in range(U) for k in ("mul", "sub")]
        pre, post = steps[:len(steps) - postc], steps[len(steps) - postc:]
        for k, u in pre:
            need(("v" if k == "mul" else "x", u))
            if k == "mul" and u == 0: stamp("first")
            (mul if k == "mul" else sub)(u)
            if warm is not None and k == "sub" and u == 0:
                A("    s_cmp_lg_u32 s17, 0")
                A("    s_cbranch_scc1 L_nowarm")
                a, imm = addr[0]
                A(f"    global_store_dwordx4 v{a}, v[{X[0]}:{X[0]+3}], s[10:11]{' offset:%d' % imm if imm else ''} {warm.replace('d', '')}")
                A("    s_waitcnt vmcnt(1)")
                A("L_nowarm:")
        need(("x", U - 1))
        stamp("allld")
        A("    s_barrier")
        stamp("prest")
        for k, u in post:
            (mul if k == "mul" else sub)(u)
        for u in range(U):
            if warm is not None and u == 0:
                A("    s_cmp_eq_u32 s17, 0")
                A("    s_cbranch_scc1 L_warmed")
            st(u, pols[u] if pols else None)
            if warm is not None and u == 0:
                A("L_warmed:")
    elif barat is not None:
        held = []
        passed = False
        def gate(pt):
            nonlocal passed
            if pt == barat:
                A("    s_barrier")
                stamp("prest")
                passed = True
                if hold is None:
                    for h in held:
                        st(h, pols[h] if pols else None)
                    held.clear()
            if hold is not None and pt == hold:
                assert passed
                for h in held:
                    st(h, pols[h] if pols else None)
                held.clear()
        gate("i")
        for u in range(U):
            need(("v", u))
            if u == 0: stamp("first")
            gate(f"v{u}")
            mul(u)
            gate(f"m{u}")
            need(("x", u))
            if u == U - 1: stamp("allld")
            gate(f"x{u}")
            sub(u)
            held.append(u)
            gate(f"c{u}")
            if (passed and (hold is None or u == U - 1)) or u < nearly:
                for h in held:
                    st(h, pols[h] if pols else None)
                held.clear()
        assert passed
    else:
        for u in range(U):
            need(("v", u))
            if u == 0: stamp("first")
            mul(u)
            need(("x", u))
            if u == U - 1: stamp("allld")
            sub(u)
            if late and u < nearly:
                st(u, estpol)
            if not late:
                if u == U - 1: stamp("prest")
                st(u)
                if wbl2 and u == wbl2[0]:
                    A(f"    s_and_b32 s15, s2, {wbl2[1]}")
                    A(f"    s_cmp_lg_u32 s15, {wbl2[2]}")
                    A(f"    s_cbranch_scc1 L_nowb")
                    A(f"    v_readfirstlane_b32 s15, v0")
                    A(f"    s_and_b32 s15, s15, {block * 16 - 1}")
                    A(f"    s_cmp_lg_u32 s15, 0")
                    A(f"    s_cbranch_scc1 L_nowb")
                    A(f"    buffer_wbl2 sc1")
                    A(f"    s_waitcnt vmcnt(0)")
                    A(f"L_nowb:")
    if late:
        if bar:
            A("    s_barrier")
        stamp("prest")
        for u in range(nearly, U):
            st(u)
    if endwb:
        mask, val, wt, pol = endwb
        if wt & 2:
            A("    s_waitcnt vmcnt(0)")
        A("    s_barrier")
        stamp("prest")
        A(f"    s_and_b32 s15, s2, {mask}")
        A(f"    s_cmp_lg_u32 s15, {val}")
        A(f"    s_cbranch_scc1 L_nowb2")
        A(f"    s_cmp_lg_u32 s17, 0")
        A(f"    s_cbranch_scc1 L_nowb2")
        A(f"    buffer_wbl2 {pol}")
        if wt & 1:
            A(f"    s_waitcnt vmcnt(0)")
        A(f"L_nowb2:")
    sgpr = 24 if (numa or endwb or warm) else 16
    if stamps:
        A("    s_waitcnt vmcnt(0)")
        stamp("end")
        A("    s_getreg_b32 s34, hwreg(HW_REG_XCC_ID)")
        A("    s_getreg_b32 s35, hwreg(HW_REG_HW_ID)")
        A("    s_mov_b64 exec, 1")
        A("    s_waitcnt lgkmcnt(0)")
        A("    v_mov_b32 v0, s20")
        for i, r in enumerate(SR + [34, 35]):
            A(f"    v_mov_b32 v{4+i}, s{r}")
        A("    global_store_dwordx4 v0, v[4:7], s[22:23]")
        A("    global_store_dwordx4 v0, v[8:11], s[22:23] offset:16")
        sgpr = 40
    A("L_end:")
    A("    s_endpgm")
    A('.section .rodata,"a"')
    A(".p2align 6")
    A(f".amdhsa_kernel {NAME}_kernel")
    A(f"  .amdhsa_next_free_vgpr {nvgpr}")
    A(f"  .amdhsa_next_free_sgpr {sgpr}")
    A(f"  .amdhsa_accum_offset {(nvgpr + 3) // 4 * 4}")
    A("  .amdhsa_group_segment_fixed_size 0")
    A("  .amdhsa_kernarg_size 48")
    A("  .amdhsa_user_sgpr_count 2")
    A("  .amdhsa_user_sgpr_kernarg_segment_ptr 1")
    A("  .amdhsa_system_sgpr_workgroup_id_x 1")
    A("  .amdhsa_float_denorm_mode_32 3")
    A(".end_amdhsa_kernel")
    return "\n".join(L) + "\n"

if __name__ == "__main__":
    ap = argparse.ArgumentParser()
    ap.add_argument("out")
    ap.add_argument("--block", type=int, default=256)
    ap.add_argument("-U", type=int, default=4)
    ap.add_argument("--ld", default="nt")
    ap.add_argument("--st", default="")
    ap.add_argument("--sig", default="after2")
    ap.add_argument("--stamps", default=None)
    ap.add_argument("--late", action="store_true")
    ap.add_argument("--nost", action="store_true")
    ap.add_argument("--order", default="vx")
    ap.add_argument("--wbl2", default=None)
    ap.add_argument("--perm", default=None)
    ap.add_argument("--step", type=int, default=None)
    ap.add_argument("--rot", type=int, default=0)
    ap.add_argument("--prio", type=int, default=None)
    ap.add_argument("--bar", action="store_true")
    ap.add_argument("--nearly", type=int, default=0)
    ap.add_argument("--est", default="")
    ap.add_argument("--barat", default=None)
    ap.add_argument("--pols", default=None)
    ap.add_argument("--numa", default=None)
    ap.add_argument("-c", type=int, default=0)
    ap.add_argument("--bits", default=None)
    ap.add_argument("--postc", type=int, default=0)
    ap.add_argument("--endwb", default=None)
    ap.add_argument("--warm", default=None)
    ap.add_argument("--fast", type=int, default=0)
    ap.add_argument("--compact", action="store_true")
    ap.add_argument("--hold", default=None)
    ap.add_argument("--depth", type=int, default=0)
    ap.add_argument("--lprio", default=None)
    ap.add_argument("--lbar", default=None)
    ap.add_argument("--inter", action="store_true")
    ap.add_argument("--ufun", default=None)
    ap.add_argument("--umask", default="0")
    a = ap.parse_args()
    open(a.out, "w").write(gen(a.block, a.U, a.ld.replace(",", " ").replace("def", ""), a.st.replace(",", " "), a.sig,
        a.stamps and a.stamps.split(","), a.late, a.order,
        a.wbl2 and [int(t, 0) for t in a.wbl2.split(",")], a.perm and [int(t) for t in a.perm.split(",")],
        a.step, a.rot, a.nost, a.prio, a.bar, a.nearly, a.est.replace(',', ' '), a.barat, a.pols and [dict(d='', s='sc1', n='nt', t='sc1 nt', a='sc0 sc1')[c] for c in a.pols], a.numa, a.c, a.bits and a.bits.split(','), a.postc,
        a.endwb and (lambda t: (int(t[0], 0), int(t[1], 0), int(t[2]), t[3].replace('+', ' ')))(a.endwb.split(',')), a.warm, a.fast, a.compact, a.hold, a.depth, a.lprio and [int(c) for c in a.lprio], a.lbar and [int(t) for t in a.lbar.split(',')], a.inter, a.ufun and [int(t) for t in a.ufun.split(',')], int(a.umask, 0)))
```
